```python
import torch

def _softmax(x, axis=-1):
    return torch.softmax(x, dim=axis)

def _gelu(x):
    return torch.nn.functional.gelu(x, approximate='tanh')

def _silu(x):
    return torch.nn.functional.silu(x)

def _sigmoid(x):
    return torch.sigmoid(x)

def _layernorm(x, axis=-1, eps=1e-05):
    m = x.mean(dim=axis, keepdim=True)
    v = x.var(dim=axis, keepdim=True, unbiased=False)
    return (x - m) / torch.sqrt(v + eps)

def _scatter_add(tgt, idx, src, axis=0):
    return tgt.clone().index_add_(axis, idx, src)

def _segment_sum(src, seg, n):
    out = torch.zeros((n,) + src.shape[1:], dtype=src.dtype)
    return out.index_add_(0, seg, src)

def _pad(x, pw):
    flat = tuple((v for pair in reversed(pw) for v in pair))
    return torch.nn.functional.pad(x, flat)
kernel_name = 'interleave_layers__memory_aug_recurrent_mem_tr__mixer_s_mlp__prompt'

def setup_inputs():

    _w = lambda a: (lambda t: t.to(torch.bfloat16) if t.is_floating_point() else t)(torch.as_tensor(a))

    def _A_setup():
        B, S, Dm = (1, 2048, 640)
        H, Dh = (32, 128)
        M, seg = (8, 32)
        seg = min(seg, S)
        S = S // seg * seg
        return {'x': _w((lambda *s: torch.randn(*s, dtype=torch.bfloat16) * 0.05)(B, S, Dm)), 'mem0': _w((lambda *s: torch.randn(*s, dtype=torch.bfloat16) * 0.8)(B, M, Dm)), 'Wq': _w((lambda *s: torch.randn(*s, dtype=torch.bfloat16) * 0.8)(Dm, H, Dh) * Dm ** (-0.5)), 'Wk': _w((lambda *s: torch.randn(*s, dtype=torch.bfloat16) * 0.8)(Dm, H, Dh) * Dm ** (-0.5)), 'Wv': _w((lambda *s: torch.randn(*s, dtype=torch.bfloat16) * 0.8)(Dm, H, Dh) * Dm ** (-0.5)), 'Wo': _w((lambda *s: torch.randn(*s, dtype=torch.bfloat16) * 0.8)(H, Dh, Dm) * (H * Dh) ** (-0.5)), 'seg_len': seg}
    _A_in = _A_setup()

    def _B_setup():
        B, S, D, F = (1, 2048, 640, 1728)
        return {'x': _w((lambda *s: torch.randn(*s, dtype=torch.bfloat16) * 0.05)(B, S, D)), 'w1': _w((lambda *s: torch.randn(*s, dtype=torch.bfloat16) * 0.8)(D, D) * D ** (-0.5)), 'w2': _w((lambda *s: torch.randn(*s, dtype=torch.bfloat16) * 0.8)(D, D) * D ** (-0.5)), 'w3': _w((lambda *s: torch.randn(*s, dtype=torch.bfloat16) * 0.8)(D, F) * D ** (-0.5)), 'w4': _w((lambda *s: torch.randn(*s, dtype=torch.bfloat16) * 0.8)(F, D) * F ** (-0.5))}
    _B_in = _B_setup()
    return {'A_x': _A_in['x'], 'A_mem0': _A_in['mem0'], 'A_Wq': _A_in['Wq'], 'A_Wk': _A_in['Wk'], 'A_Wv': _A_in['Wv'], 'A_Wo': _A_in['Wo'], 'A_seg_len': _A_in['seg_len'], 'B_x': _B_in['x'], 'B_w1': _B_in['w1'], 'B_w2': _B_in['w2'], 'B_w3': _B_in['w3'], 'B_w4': _B_in['w4']}

def reference(A_x, A_mem0, A_Wq, A_Wk, A_Wv, A_Wo, A_seg_len, B_x, B_w1, B_w2, B_w3, B_w4):

    def _A_ref(x, mem0, Wq, Wk, Wv, Wo, seg_len):
        B, S, Dm = x.shape
        H, Dh = (Wq.shape[1], Wq.shape[2])
        M = mem0.shape[1]
        scale = Dh ** (-0.5)
        n_seg = S // seg_len
        L = M + seg_len
        idx = torch.arange(L)
        mask = (idx[:, None] < M) | (idx[:, None] >= idx[None, :])
        mem = mem0
        outs = []
        for s in range(n_seg):
            xs = x[:, s * seg_len:(s + 1) * seg_len, :].clone()
            h = torch.concatenate([mem, xs], axis=1)
            q = torch.einsum('btd,dhe->bhte', h, Wq)
            k = torch.einsum('btd,dhe->bhte', h, Wk)
            v = torch.einsum('btd,dhe->bhte', h, Wv)
            scores = torch.einsum('bhqe,bhke->bhqk', q, k) * scale
            scores = torch.where(mask[None, None], scores, -1000000000.0)
            p = _softmax(scores, axis=-1)
            o = torch.einsum('bhqk,bhke->bhqe', p, v)
            o = torch.einsum('bhte,hed->btd', o, Wo)
            mem = o[:, :M, :].clone()
            outs.append(o[:, M:, :])
        return torch.concatenate(outs, axis=1)

    def _B_ref(x, w1, w2, w3, w4):
        B, S, D = x.shape
        h = _gelu(_layernorm(x, axis=-1) @ w1)
        c = D // 4
        g0 = _pad(h[:, :, 0 * c:1 * c], ((0, 0), (1, 0), (0, 0)))[:, :S, :]
        g1 = _pad(h[:, :, 1 * c:2 * c], ((0, 0), (0, 1), (0, 0)))[:, 1:, :]
        g2 = _pad(h[:, :, 2 * c:3 * c], ((0, 0), (2, 0), (0, 0)))[:, :S, :]
        g3 = _pad(h[:, :, 3 * c:], ((0, 0), (0, 2), (0, 0)))[:, 2:, :]
        hs = torch.concatenate([g0, g1, g2, g3], axis=-1) @ w2
        x1 = x + hs
        h2 = _gelu(_layernorm(x1, axis=-1) @ w3) @ w4
        return x1 + h2
    x = A_x
    x = x + _A_ref(_layernorm(x, axis=-1), A_mem0, A_Wq, A_Wk, A_Wv, A_Wo, A_seg_len)
    x = x + _B_ref(_layernorm(x, axis=-1), B_w1, B_w2, B_w3, B_w4)
    x = x + _A_ref(_layernorm(x, axis=-1), A_mem0, A_Wq, A_Wk, A_Wv, A_Wo, A_seg_len)
    x = x + _B_ref(_layernorm(x, axis=-1), B_w1, B_w2, B_w3, B_w4)
    return x
```

```python
class Asm:
    def __init__(self):
        self.lines = []
        self.kernels = []
        self.launches = []
        self.uid = 0
    def __call__(self, s):
        for ln in s.split('\n'):
            ln = ln.strip()
            if ln:
                self.lines.append(('' if ln.endswith(':') else '    ') + ln)
    def label(self, base='L'):
        self.uid += 1
        return f'{base}_{self.uid}'
    def begin(self, name):
        self.lines += [f'.globl {name}', '.p2align 8', f'.type {name},@function', f'{name}:']
    def end(self, name, vgpr, sgpr=102, accum=None):
        if accum is None:
            accum = min(256, (vgpr + 3) // 4 * 4)
        self.kernels.append((name, vgpr, sgpr, accum))
    def launch(self, name, grid, block, lds):
        self.launches.append(f'; @launch kernel={name} grid=({grid},1,1) block=({block},1,1) lds={lds}')
    def text(self, header=''):
        out = []
        if header:
            out += [('; ' + l if not l.startswith(';') else l) for l in header.strip().split('\n')]
        out += self.launches
        out += ['.amdgcn_target "amdgcn-amd-amdhsa--gfx950"', '.text']
        out += self.lines
        out += ['.section .rodata,"a"']
        for (n, v, s, a) in self.kernels:
            out += ['.p2align 6', f'.amdhsa_kernel {n}', f'  .amdhsa_next_free_vgpr {v}',
                    f'  .amdhsa_next_free_sgpr {s}', f'  .amdhsa_accum_offset {a}',
                    '  .amdhsa_group_segment_fixed_size 0', '  .amdhsa_kernarg_size 120',
                    '  .amdhsa_user_sgpr_count 2', '  .amdhsa_user_sgpr_kernarg_segment_ptr 1',
                    '  .amdhsa_system_sgpr_workgroup_id_x 1',
                    '  .amdhsa_float_denorm_mode_32 3',
                    '.end_amdhsa_kernel']
        return '\n'.join(out) + '\n'

def v(i, n=1):
    return f'v{i}' if n == 1 else f'v[{i}:{i+n-1}]'
def a(i, n=1):
    return f'a{i}' if n == 1 else f'a[{i}:{i+n-1}]'
def s(i, n=1):
    return f's{i}' if n == 1 else f's[{i}:{i+n-1}]'
def r(i, n=1):
    if i < 256:
        assert i + n <= 256
        return v(i, n)
    return a(i - 256, n)

class Sb:
    def __init__(self, A, name, maxv):
        self.A, self.name, self.maxv = A, name, maxv
        self.n = 0
        self.done = 0
    def issue(self, txt):
        self.A(txt)
        self.n += 1
        return self.n
    def wait(self, tok):
        if tok is None or tok <= self.done:
            return
        left = self.n - tok
        if left > self.maxv:
            left = self.maxv
        self.A(f's_waitcnt {self.name}({left})')
        self.done = self.n - left
    def waitall(self):
        self.wait(self.n)
    def reset(self):
        self.done = self.n
```

```python
from asm import *
import layout as L
import math, struct
def f32bits(x): return struct.unpack('<I', struct.pack('<f', x))[0]
def fh(x): return hex(f32bits(x))

S_WAVE, S_IDX, S_LAYER, S_GRP = 12, 13, 14, 15
S_B, S_BSTEP, S_SRC, S_DST, S_DEP, S_FLAG, S_PRE, S_SPIN, S_BUF, S_DEPM = range(16, 26)
S_T0, S_T1, S_T2, S_T3 = 30, 31, 32, 33
S_R1, S_R2, S_DST2, S_NEED = 34, 35, 36, 37
S_C0, S_C1, S_C2, S_C3 = 40, 41, 42, 43
S_HI = 44
SPIN_CAP = 1 << 16
EXIT = 'L_exit'

def lay(A, dst, fn, extra=0):
    A(f's_mul_i32 s{dst}, s{S_LAYER}, {fn(1)-fn(0)}\ns_add_u32 s{dst}, s{dst}, {fn(0)+extra}')

def poll(A, vtmp, vdep, saddr, sneed, cap=SPIN_CAP):
    l0, l1 = A.label('P'), A.label('P')
    A(f'''
    s_mov_b32 s{S_SPIN}, 0
    {l0}:
    buffer_load_dword v{vtmp}, v{vdep}, s[4:7], s{saddr} offen sc1
    s_waitcnt vmcnt(0)
    v_cmp_gt_u32 vcc, s{sneed}, v{vtmp}
    s_cbranch_vccz {l1}
    s_add_u32 s{S_SPIN}, s{S_SPIN}, 1
    s_cmp_gt_u32 s{S_SPIN}, {cap}
    s_cbranch_scc1 {EXIT}
    s_sleep 1
    s_branch {l0}
    {l1}:
    ''')

class G: pass

def gen_gemm(A, name, KS, NT, form='T', ln=0, epi='store', wsel=None, dbuf=True, shift=False, setup=None, again=None):
    vm = Sb(A, 'vmcnt', 63); lg = Sb(A, 'lgkmcnt', 15)
    NW = KS * NT * 4
    WB = 512 - NW
    wreg = lambda s, t: WB + (s * NT + t) * 4
    V_L16, V_XB, V_XB2, V_SB, V_DMA, V_DEP, V_OUT, V_OUT2, V_FL, V_SW, V_SR, V_YB = range(0, 12)
    TMP = 12
    EXT = 20
    XS = 24
    ACC = 48
    ST = ACC + 16 * NT
    assert ST + 16 <= WB, (name, ST, WB)
    BUFB = KS * 1024
    LDS_ST = 2 * BUFB if dbuf else BUFB
    A(f'{name}:')
    T = TMP
    A(f'''
    v_mbcnt_lo_u32_b32 v{T}, -1, 0
    v_mbcnt_hi_u32_b32 v{T}, -1, v{T}      ; lane
    v_lshlrev_b32 v{V_L16}, 4, v{T}
    s_mov_b32 s{S_HI}, 0
    s_mov_b32 s{S_HI+1}, -1
    s_barrier
    ''')
    ldw = wsel(A)
    RB = 64 * NT; RPI = 16 // NT; PPR = 4 * NT
    A(f'''
    v_lshrrev_b32 v{T+1}, {int(math.log2(PPR))}, v{T}
    v_and_b32 v{T+2}, {PPR-1}, v{T}
    s_mov_b32 s{S_T0}, {ldw}
    v_mul_lo_u32 v{T+1}, v{T+1}, s{S_T0}
    v_lshl_add_u32 v{T+1}, v{T+2}, 4, v{T+1}
    s_mul_i32 s{S_T0}, s{S_WAVE}, {RB}
    s_add_u32 s{S_T0}, s{S_T0}, s{S_T2}
    v_add_u32 v{T+1}, s{S_T0}, v{T+1}
    v_lshrrev_b32 v{T+2}, 5, v{T}              ; hf
    v_bfe_u32 v{T+3}, v{T}, 2, 2               ; r
    v_lshl_add_u32 v{T+3}, v{T+2}, 3, v{T+3}
    v_mul_u32_u24 v{T+3}, {RB}, v{T+3}
    v_bfe_u32 v{T+4}, v{T}, 4, 1
    v_lshl_add_u32 v{T+3}, v{T+4}, 5, v{T+3}
    v_and_b32 v{T+4}, 1, v{T}
    v_lshl_add_u32 v{T+3}, v{T+4}, 4, v{T+3}
    v_bfe_u32 v{T+4}, v{T}, 1, 1
    v_lshl_add_u32 v{T+3}, v{T+4}, 3, v{T+3}
    s_mul_i32 s{S_T3}, s{S_WAVE}, 40960
    v_add_u32 v{T+3}, s{S_T3}, v{T+3}
    ''')
    NI = KS * NT
    RING = 40
    dtok = {}; rtok = {}
    def rd(s):
        vm.wait(dtok[s * NT + NT - 1])
        o = ((s * NT) % RING) * 1024
        for t in range(NT):
            lg.issue(f'ds_read_b64_tr_b16 {r(wreg(s,t),2)}, v{T+3} offset:{o+64*t}')
            rtok[s] = lg.issue(f'ds_read_b64_tr_b16 {r(wreg(s,t)+2,2)}, v{T+3} offset:{o+64*t+4*RB}')
    nrd = 0
    for i in range(NI):
        if i >= RING:
            sp = (i - RING) // NT
            while nrd <= sp:
                rd(nrd); nrd += 1
            lg.wait(rtok[sp])
        A(f's_add_u32 m0, s{S_T3}, {(i % RING) * 1024}\ns_mov_b32 s{S_T0}, {i * RPI * ldw}')
        dtok[i] = vm.issue(f'buffer_load_dwordx4 v{T+1}, s[8:11], s{S_T0} offen lds')
        while (nrd + 1) * NT <= i - 30:
            rd(nrd); nrd += 1
    while nrd < KS:
        rd(nrd); nrd += 1
    lg.waitall()
    if ln:
        for i in range(4):
            A(f'v_mov_b32 v{XS+i}, 0x3f803f80')
        A('s_nop 1')
        for s in range(KS):
            for t in range(NT):
                c = '0' if s == 0 else v(ACC + 16 * t, 16)
                A(f'v_mfma_f32_32x32x16_bf16 {v(ACC+16*t,16)}, v[{XS}:{XS+3}], {r(wreg(s,t),4)}, {c}')
        A('s_nop 15')
        for t in range(NT):
            cs = ACC + 16 * t; e = EXT + 2 * t
            A(f'''
            v_cvt_pk_bf16_f32 v{e}, v{cs}, v{cs}
            v_and_b32 v{T+1}, 0xffff0000, v{e}
            v_sub_f32 v{T+1}, v{cs}, v{T+1}
            v_cvt_pk_bf16_f32 v{e+1}, v{T+1}, 0
            v_cndmask_b32 v{e}, v{e}, 0, s[{S_HI}:{S_HI+1}]
            v_cndmask_b32 v{e+1}, v{e+1}, 0, s[{S_HI}:{S_HI+1}]
            ''')
    KQ = KS // 4
    A(f'''
    v_and_b32 v{T+1}, 31, v{T}                 ; token
    v_lshrrev_b32 v{T+2}, 5, v{T}              ; hf
    ''')
    if shift:
        A(f'''
        s_lshr_b32 s{S_T0}, s{S_WAVE}, 1
        s_add_u32 s{S_T0}, s{S_T0}, 1          ; |delta|
        s_sub_u32 s{S_T1}, 0, s{S_T0}
        s_bitcmp1_b32 s{S_WAVE}, 0
        s_cselect_b32 s{S_T0}, s{S_T0}, s{S_T1}
        s_add_u32 s{S_T0}, s{S_T0}, 32
        v_add_u32 v{T+3}, s{S_T0}, v{T+1}      ; t+delta+32
        v_lshrrev_b32 v{T+4}, 5, v{T+3}
        v_mul_u32_u24 v{T+4}, {L.BLK}, v{T+4}
        v_and_b32 v{T+3}, 31, v{T+3}
        v_lshl_add_u32 v{T+3}, v{T+2}, 5, v{T+3}
        v_lshl_add_u32 v{V_DMA}, v{T+3}, 4, v{T+4}
        ''')
    else:
        A(f'v_mov_b32 v{V_DMA}, v{V_L16}')
    A(f'''
    s_mul_i32 s{S_T0}, s{S_WAVE}, {KQ*1024}
    v_add_u32 v{V_DMA}, s{S_T0}, v{V_DMA}
    v_lshlrev_b32 v{V_SR}, 6, v{T+1}
    v_add_u32 v{V_SR}, {LDS_ST}, v{V_SR}
    s_lshl_b32 s{S_T0}, s{S_WAVE}, 4
    v_lshl_add_u32 v{V_SW}, v{T+2}, 3, v{V_SR}
    v_add_u32 v{V_SW}, s{S_T0}, v{V_SW}
    s_mul_i32 s{S_T0}, s{S_WAVE}, {NT*2048}
    v_add_u32 v{V_OUT}, s{S_T0}, v{V_L16}
    v_add_u32 v{V_OUT2}, 1024, v{V_OUT}
    s_mov_b32 s{S_C0}, {fh(-2*0.7978845608028654*math.log2(math.e))}
    s_mov_b32 s{S_C1}, {fh(-2*0.7978845608028654*0.044715*math.log2(math.e))}
    s_mov_b32 s{S_C2}, {fh(1/640.)}
    s_mov_b32 s{S_C3}, {fh(1e-5)}
    ''')
    A(f'{name}_job:')
    g = G(); g.T = T; g.V_OUT = V_OUT; g.V_OUT2 = V_OUT2; g.V_L16 = V_L16
    cfg = setup(A, g)
    srcblk, dstblk, ndep = cfg['srcblk'], cfg['dstblk'], cfg['ndep']
    depadd = cfg.get('depadd', 1)
    A(f'''
    v_mbcnt_lo_u32_b32 v{T}, -1, 0
    v_mbcnt_hi_u32_b32 v{T}, -1, v{T}
    v_min_u32 v{V_DEP}, {ndep-1}, v{T}
    v_lshlrev_b32 v{V_DEP}, 2, v{V_DEP}
    v_mov_b32 v{V_FL}, 0
    s_mov_b32 s{S_PRE}, 0
    s_mov_b32 s{S_BUF}, 0
    s_barrier
    ''')
    def depaddr(sb):
        A(f'''
        s_and_b32 s{S_T1}, s{sb}, s{S_DEPM}
        s_lshl_b32 s{S_T1}, s{S_T1}, 8
        s_add_u32 s{S_T1}, s{S_T1}, s{S_DEP}
        s_add_u32 s{S_NEED}, s{sb}, {depadd}
        s_min_u32 s{S_NEED}, s{S_NEED}, 64
        ''')
        if cfg.get('nodep0'):
            A(f's_cmp_eq_u32 s{S_LAYER}, 0\ns_cselect_b32 s{S_NEED}, 0, s{S_NEED}')
    def dma(sb, sbuf):
        A(f'''
        s_mul_i32 s{S_T0}, s{sb}, {srcblk}
        s_add_u32 s{S_T0}, s{S_T0}, s{S_SRC}
        s_mul_i32 s{S_T1}, s{S_WAVE}, {KQ*1024}
        s_add_u32 s{S_T1}, s{S_T1}, s{sbuf}
        ''')
        for i in range(KQ):
            if i % 4 == 0:
                if i:
                    A(f's_add_u32 s{S_T0}, s{S_T0}, 4096\ns_add_u32 s{S_T1}, s{S_T1}, 4096')
                A(f's_mov_b32 m0, s{S_T1}\ns_nop 0')
            A(f'buffer_load_dwordx4 v{V_DMA}, s[4:7], s{S_T0} offen offset:{(i%4)*1024} sc1 lds')
    A(f'{name}_loop:')
    lpre = A.label('G')
    A(f's_cmp_lg_u32 s{S_PRE}, 0\ns_cbranch_scc1 {lpre}')
    depaddr(S_B)
    poll(A, T, V_DEP, S_T1, S_NEED)
    dma(S_B, S_BUF)
    A(f'{lpre}:')
    nres = cfg.get('nres', 0)
    for k in range(nres):
        sr = (S_R1, S_R2)[k]
        A(f's_mul_i32 s{S_T0}, s{S_B}, {L.BLK}\ns_add_u32 s{S_T0}, s{S_T0}, s{sr}')
        A(f's_mul_i32 s{S_T1}, s{S_WAVE}, 2048\ns_add_u32 s{S_T0}, s{S_T0}, s{S_T1}')
        A(f'buffer_load_dwordx4 v[{ST+8*k}:{ST+8*k+3}], v{V_L16}, s[4:7], s{S_T0} offen sc1')
        A(f'buffer_load_dwordx4 v[{ST+8*k+4}:{ST+8*k+7}], v{V_L16}, s[4:7], s{S_T0} offen offset:1024 sc1')
    if dbuf:
        A(f's_add_u32 s{S_T2}, s{S_B}, s{S_BSTEP}')
        depaddr(S_T2)
        A(f'buffer_load_dword v{T}, v{V_DEP}, s[4:7], s{S_T1} offen sc1')
    A(f'''
    v_add_u32 v{V_XB}, s{S_BUF}, v{V_L16}
    v_add_u32 v{V_XB2}, 0x10000, v{V_XB}
    s_mul_i32 s{S_T0}, s{S_WAVE}, {KQ*1024}
    v_add_u32 v{V_SB}, s{S_T0}, v{V_XB}
    s_waitcnt vmcnt(0)
    s_barrier
    ''')
    vm.reset(); lg.reset()
    xt = {}
    def xread(s):
        if s < KS:
            base, off = (V_XB, s * 1024) if s < 64 else (V_XB2, (s - 64) * 1024)
            sl = XS + 4 * (s % 6)
            xt[s] = lg.issue(f'ds_read_b128 v[{sl}:{sl+3}], v{base} offset:{off}')
    for s in range(5):
        xread(s)
    if dbuf:
        lno = A.label('G')
        A(f'''
        s_mov_b32 s{S_PRE}, 0
        s_cmp_ge_u32 s{S_T2}, 64
        s_cbranch_scc1 {lno}
        v_cmp_gt_u32 vcc, s{S_NEED}, v{T}
        s_cbranch_vccnz {lno}
        s_mov_b32 s{S_PRE}, 1
        s_sub_u32 s{S_T3}, {BUFB}, s{S_BUF}
        ''')
        dma(S_T2, S_T3)
        A(f'{lno}:')
    if nres:
        for j in range(8):
            A(f'v_lshlrev_b32 v{ACC+2*j}, 16, v{ST+j}\nv_and_b32 v{ACC+2*j+1}, 0xffff0000, v{ST+j}')
        if nres == 2:
            for j in range(8):
                A(f'v_lshlrev_b32 v{T+1}, 16, v{ST+8+j}\nv_and_b32 v{T+2}, 0xffff0000, v{ST+8+j}')
                A(f'v_add_f32 v{ACC+2*j}, v{ACC+2*j}, v{T+1}\nv_add_f32 v{ACC+2*j+1}, v{ACC+2*j+1}, v{T+2}')
        A('s_nop 1')
    side = []
    SA = T + 4
    MEAN, RSTD, AX = T + 1, T + 2, ST + 8
    if ln:
        st = {}
        def mk_read(i):
            def f():
                sl = ST + 4 * (i % 2)
                st[i] = lg.issue(f'ds_read_b128 v[{sl}:{sl+3}], v{V_SB} offset:{i*1024}')
            return f
        def mk_txt(t, wait=None):
            def f():
                if wait is not None: lg.wait(st[wait])
                A(t)
            return f
        for i in range(4):
            side.append(mk_txt(f'v_mov_b32 v{SA+i}, 0'))
        side.append(mk_txt(f'v_mov_b32 v{T+3}, 0x3f803f80'))
        side.append(mk_read(0)); side.append(mk_read(1))
        for i in range(KQ):
            sl = ST + 4 * (i % 2)
            for j in range(4):
                side.append(mk_txt(f'v_dot2c_f32_bf16 v{SA+(j&1)}, v{sl+j}, v{T+3}', i if j == 0 else None))
                side.append(mk_txt(f'v_dot2c_f32_bf16 v{SA+2+(j&1)}, v{sl+j}, v{sl+j}'))
            if i + 2 < KQ:
                side.append(mk_read(i + 2))
        side.append(mk_txt('s_nop 2'))
        side.append(mk_txt(f'v_add_f32 v{SA}, v{SA}, v{SA+1}'))
        side.append(mk_txt(f'v_add_f32 v{SA+1}, v{SA+2}, v{SA+3}'))
        def wr():
            st['w'] = lg.issue(f'ds_write_b64 v{V_SW}, v[{SA}:{SA+1}]')
        side.append(wr)
    nslots = KS * NT
    per = -(-len(side) // max(1, nslots - 4)) if side else 0
    for s in range(KS):
        lg.wait(xt[s])
        sl = XS + 4 * (s % 6)
        for t in range(NT):
            c = '0' if (s == 0 and not nres) else v(ACC + 16 * t, 16)
            if form == 'T':
                A(f'v_mfma_f32_32x32x16_bf16 {v(ACC+16*t,16)}, {r(wreg(s,t),4)}, v[{sl}:{sl+3}], {c}')
            else:
                A(f'v_mfma_f32_32x32x16_bf16 {v(ACC+16*t,16)}, v[{sl}:{sl+3}], {r(wreg(s,t),4)}, {c}')
            if t == 0:
                xread(s + 5)
            for _ in range(per):
                if side: side.pop(0)()
    while side:
        side.pop(0)()
    if ln:
        lg.waitall()
        A('s_barrier')
        tk = [lg.issue(f'ds_read_b128 v[{XS+4*i}:{XS+4*i+3}], v{V_SR} offset:{16*i}') for i in range(4)]
        if epi == 'gelu_y':
            A(f's_lshl_b32 s{S_T0}, s{S_IDX}, 13\ns_add_u32 s{S_T0}, s{S_T0}, s{S_BUF}')
            A(f'v_add_u32 v{V_YB}, s{S_T0}, v{V_OUT}')
            lg.issue(f'ds_read_b128 v[{ST}:{ST+3}], v{V_YB}')
            ytok = lg.issue(f'ds_read_b128 v[{ST+4}:{ST+7}], v{V_YB} offset:1024')
        lg.wait(tk[3])
        for i in range(4):
            A(f'v_pk_add_f32 v[{XS+4*i}:{XS+4*i+1}], v[{XS+4*i}:{XS+4*i+1}], v[{XS+4*i+2}:{XS+4*i+3}]')
        A(f'''
        v_pk_add_f32 v[{XS}:{XS+1}], v[{XS}:{XS+1}], v[{XS+4}:{XS+5}]
        v_pk_add_f32 v[{XS+8}:{XS+9}], v[{XS+8}:{XS+9}], v[{XS+12}:{XS+13}]
        v_pk_add_f32 v[{XS}:{XS+1}], v[{XS}:{XS+1}], v[{XS+8}:{XS+9}]
        v_mul_f32 v{MEAN}, s{S_C2}, v{XS}
        v_mul_f32 v{XS+1}, s{S_C2}, v{XS+1}
        v_sub_f32 v{XS+2}, 0, v{MEAN}
        v_cvt_pk_bf16_f32 v{AX+1}, v{XS+2}, v{XS+2}
        v_fma_f32 v{XS+1}, -v{MEAN}, v{MEAN}, v{XS+1}
        v_and_b32 v{XS+3}, 0xffff0000, v{AX+1}
        v_max_f32 v{XS+1}, 0, v{XS+1}              ; var
        v_sub_f32 v{XS+2}, v{XS+2}, v{XS+3}
        v_add_f32 v{XS+4}, s{S_C3}, v{XS+1}
        v_cvt_pk_bf16_f32 v{AX}, v{XS+3}, v{XS+2}
        v_rsq_f32 v{RSTD}, v{XS+4}
        s_nop 0
        ''')
        for t in range(NT):
            a_, b_ = f'v[{EXT+2*t}:{EXT+2*t+1}]', f'v[{AX}:{AX+1}]'
            if form == 'N': a_, b_ = b_, a_
            A(f'v_mfma_f32_32x32x8_bf16 {v(ACC+16*t,16)}, {a_}, {b_}, {v(ACC+16*t,16)}')
        SCL = RSTD
        if ln == 2:
            SCL = T + 3
            A(f'''
            v_mul_f32 v{XS+4}, v{RSTD}, v{RSTD}
            v_fma_f32 v{XS+4}, v{XS+4}, v{XS+1}, s{S_C3}
            v_rsq_f32 v{XS+4}, v{XS+4}
            s_nop 0
            v_mul_f32 v{SCL}, v{XS+4}, v{RSTD}
            ''')
        if form == 'N':
            A(f'''
            v_cvt_pk_bf16_f32 v{XS+4}, v{RSTD}, v{RSTD}
            v_and_b32 v{XS+4}, 0xffff0000, v{XS+4}
            v_sub_f32 v{XS+5}, v{RSTD}, v{XS+4}
            v_cvt_pk_bf16_f32 v{ST+10}, v{XS+4}, v{XS+5}
            v_and_b32 v{XS+4}, 0xffff0000, v{ST+10}
            v_sub_f32 v{XS+5}, v{XS+5}, v{XS+4}
            v_cvt_pk_bf16_f32 v{ST+11}, v{XS+5}, 0
            v_mov_b32 v{XS+4}, 0x3f803f80
            v_cndmask_b32 v{ST+12}, v{XS+4}, 0, s[{S_HI}:{S_HI+1}]
            v_cndmask_b32 v{ST+13}, v{XS+4}, 0, s[{S_HI}:{S_HI+1}]
            s_nop 1
            v_mfma_f32_32x32x8_bf16 v[{XS+8}:{XS+23}], v[{ST+10}:{ST+11}], v[{ST+12}:{ST+13}], 0
            ''')
    A(f's_mul_i32 s{S_T0}, s{S_B}, s{S_DST2}' if cfg.get('dyndst') else f's_mul_i32 s{S_T0}, s{S_B}, {dstblk}')
    A(f's_add_u32 s{S_T0}, s{S_T0}, s{S_DST}')
    if epi == 'gelu_y':
        lg.wait(ytok)
        A(f'v_mul_f32 v{XS+5}, v{MEAN}, v{RSTD}')
        for j in range(8):
            A(f'''v_lshlrev_b32 v{XS+6}, 16, v{ST+j}
            v_and_b32 v{XS+7}, 0xffff0000, v{ST+j}
            v_fma_f32 v{XS+6}, v{XS+6}, v{RSTD}, -v{XS+5}
            v_fma_f32 v{XS+7}, v{XS+7}, v{RSTD}, -v{XS+5}
            v_cvt_pk_bf16_f32 v{ST+j}, v{XS+6}, v{XS+7}''')
        A(f's_mul_i32 s{S_T1}, s{S_B}, {L.BLK}\ns_add_u32 s{S_T1}, s{S_T1}, s{S_DST2}')
        A(f'buffer_store_dwordx4 v[{ST}:{ST+3}], v{V_OUT}, s[4:7], s{S_T1} offen sc1')
        A(f'buffer_store_dwordx4 v[{ST+4}:{ST+7}], v{V_OUT}, s[4:7], s{S_T1} offen offset:1024 sc1')
    else:
        A('s_nop 15')
    osrd = 's[8:11]' if cfg.get('dyndst') else 's[4:7]'
    for t in range(NT):
        a0 = ACC + 16 * t
        if ln and form == 'T':
            for i in range(16):
                A(f'v_mul_f32 v{a0+i}, v{a0+i}, v{SCL}')
        elif ln:
            for i in range(16):
                A(f'v_mul_f32 v{a0+i}, v{a0+i}, v{XS+8+i}')
        if epi.startswith('gelu'):
            G0 = XS
            for h in range(2):
                xs = [a0 + 8 * h + i for i in range(8)]
                for i, x in enumerate(xs): A(f'v_mul_f32 v{G0+i}, v{x}, v{x}')
                A(f'v_mov_b32 v{G0+8}, s{S_C0}')
                for i, x in enumerate(xs): A(f'v_fma_f32 v{G0+i}, v{G0+i}, s{S_C1}, v{G0+8}')
                for i, x in enumerate(xs): A(f'v_mul_f32 v{G0+i}, v{G0+i}, v{x}')
                for i, x in enumerate(xs): A(f'v_exp_f32 v{G0+i}, v{G0+i}')
                for i, x in enumerate(xs): A(f'v_add_f32 v{G0+i}, 1.0, v{G0+i}')
                for i, x in enumerate(xs): A(f'v_rcp_f32 v{G0+i}, v{G0+i}')
                for i, x in enumerate(xs): A(f'v_mul_f32 v{x}, v{x}, v{G0+i}')
        for j in range(8):
            A(f'v_cvt_pk_bf16_f32 v{a0+j}, v{a0+2*j}, v{a0+2*j+1}')
        A(f'buffer_store_dwordx4 v[{a0}:{a0+3}], v{V_OUT}, {osrd}, s{S_T0} offen offset:{2048*t} sc1')
        A(f'buffer_store_dwordx4 v[{a0+4}:{a0+7}], v{V_OUT2}, {osrd}, s{S_T0} offen offset:{2048*t} sc1')
    lnf = A.label('G')
    A(f'''
    s_add_u32 s{S_T1}, s{S_B}, 1
    v_mov_b32 v{T}, s{S_T1}
    s_waitcnt vmcnt(0)
    s_barrier
    s_cmp_lg_u32 s{S_WAVE}, 0
    s_cbranch_scc1 {lnf}
    s_mov_b64 exec, 1
    buffer_store_dword v{T}, v{V_FL}, s[4:7], s{S_FLAG} offen sc1
    s_mov_b64 exec, -1
    {lnf}:
    ''')
    if dbuf:
        A(f's_sub_u32 s{S_BUF}, {BUFB}, s{S_BUF}')
    A(f'''
    s_add_u32 s{S_B}, s{S_B}, s{S_BSTEP}
    s_cmp_lt_u32 s{S_B}, 64
    s_cbranch_scc1 {name}_loop
    ''')
    if again:
        again(A, f'{name}_job')
    A('s_branch L_next')

def wsel_simple(karg, nbytes, ldw, off_code):
    def f(A):
        A(f'''
        s_load_dwordx2 s[8:9], s[0:1], {karg}
        s_mov_b32 s10, {nbytes}
        s_mov_b32 s11, 0x20000
        ''')
        A(off_code)
        A('s_waitcnt lgkmcnt(0)')
        return ldw
    return f

def common(A, src, dst, dep, flagname, dstextra=0, bstep=1):
    lay(A, S_SRC, src); lay(A, S_DST, dst, dstextra)
    lay(A, S_DEP, lambda l: L.flag(dep, l)); lay(A, S_FLAG, lambda l: L.flag(flagname, l))
    A(f'''
    s_lshl_b32 s{S_T0}, s{S_IDX}, 2
    s_add_u32 s{S_FLAG}, s{S_FLAG}, s{S_T0}
    s_mov_b32 s{S_DEPM}, 0
    s_mov_b32 s{S_B}, 0
    s_mov_b32 s{S_BSTEP}, {bstep}
    s_lshl_b32 s{S_T3}, s{S_IDX}, 13
    ''')

def gen_all_gemms(A):
    def wsel_qk(A):
        A(f'''
        s_load_dwordx2 s[8:9], s[0:1], 16
        s_load_dwordx2 s[46:47], s[0:1], 24
        s_mov_b32 s10, 5242880
        s_mov_b32 s11, 0x20000
        s_and_b32 s{S_T2}, s{S_IDX}, 15
        s_lshl_b32 s{S_T2}, s{S_T2}, 9
        s_waitcnt lgkmcnt(0)
        s_cmp_lt_u32 s{S_IDX}, 16
        s_cselect_b32 s8, s8, s46
        s_cselect_b32 s9, s9, s47
        ''')
        return 8192
    def setup_qkv(A, g):
        lay(A, S_SRC, L.X); lay(A, S_DST, L.Q); lay(A, S_FLAG, lambda l: L.flag('QKV', l))
        A(f'''
        s_lshr_b32 s{S_T0}, s{S_IDX}, 4
        s_lshl_b32 s{S_T0}, s{S_T0}, 24
        s_add_u32 s{S_DST}, s{S_DST}, s{S_T0}
        s_and_b32 s{S_T0}, s{S_IDX}, 15
        s_lshl_b32 s{S_T0}, s{S_T0}, 14
        s_add_u32 s{S_DST}, s{S_DST}, s{S_T0}
        s_lshl_b32 s{S_T0}, s{S_IDX}, 2
        s_add_u32 s{S_FLAG}, s{S_FLAG}, s{S_T0}
        s_lshl_b32 s{S_T0}, s{S_GRP}, 8
        s_add_u32 s{S_FLAG}, s{S_FLAG}, s{S_T0}
        s_mov_b32 s{S_DEP}, {L.flag('M4', 0)}
        s_mov_b32 s{S_DEPM}, 1
        s_mov_b32 s{S_B}, s{S_GRP}
        s_sub_u32 s{S_BSTEP}, 2, s{S_LAYER}
        ''')
        return dict(srcblk=L.BLK, dstblk=262144, ndep=5, nodep0=True)
    def again_qkv(A, lab):
        l = A.label('G')
        A(f'''
        s_or_b32 s{S_T0}, s{S_GRP}, s{S_LAYER}
        s_cbranch_scc1 {l}
        s_mov_b32 s{S_LAYER}, 1
        s_branch {lab}
        {l}:
        ''')
    gen_gemm(A, 'RQK', 40, 2, 'T', 1, 'store', wsel_qk, setup=setup_qkv, again=again_qkv)
    gen_gemm(A, 'RV', 40, 2, 'N', 1, 'store',
             wsel_simple(32, 5242880, 8192, f's_and_b32 s{S_T2}, s{S_IDX}, 15\ns_lshl_b32 s{S_T2}, s{S_T2}, 9'),
             setup=setup_qkv, again=again_qkv)
    def setup_o(A, g):
        common(A, L.O, L.OP, 'AT', 'O')
        A(f'''
        s_and_b32 s{S_T0}, s{S_IDX}, 3
        s_lshl_b32 s{S_T1}, s{S_T0}, 16
        s_add_u32 s{S_SRC}, s{S_SRC}, s{S_T1}
        s_mul_i32 s{S_T1}, s{S_T0}, {L.OPK}
        s_add_u32 s{S_DST}, s{S_DST}, s{S_T1}
        s_lshl_b32 s{S_T1}, s{S_T0}, 5
        s_add_u32 s{S_DEP}, s{S_DEP}, s{S_T1}
        s_lshr_b32 s{S_T0}, s{S_IDX}, 2
        s_lshl_b32 s{S_T0}, s{S_T0}, 13
        s_add_u32 s{S_DST}, s{S_DST}, s{S_T0}
        ''')
        return dict(srcblk=262144, dstblk=L.BLK, ndep=8)
    gen_gemm(A, 'RO', 64, 1, 'T', 0, 'store',
             wsel_simple(40, 5242880, 1280, f'''s_and_b32 s{S_T2}, s{S_IDX}, 3
             s_mul_i32 s{S_T2}, s{S_T2}, {1024*1280}
             s_lshr_b32 s{S_T0}, s{S_IDX}, 2
             s_lshl_b32 s{S_T0}, s{S_T0}, 8
             s_add_u32 s{S_T2}, s{S_T2}, s{S_T0}'''), setup=setup_o)
    offj = f's_lshl_b32 s{S_T2}, s{S_IDX}, 8'
    def setup_m1(A, g):
        common(A, L.X1, L.H, 'RL', 'M1', dstextra=L.BLK)
        lay(A, S_DST2, L.Y)
        A(f's_add_u32 s{S_DST}, s{S_DST}, s{S_T3}\ns_add_u32 s{S_DST2}, s{S_DST2}, s{S_T3}')
        return dict(srcblk=L.BLK, dstblk=L.BLK, ndep=20)
    gen_gemm(A, 'RM1', 40, 1, 'T', 2, 'gelu_y', wsel_simple(64, 819200, 1280, offj), setup=setup_m1)
    def setup_m2(A, g):
        common(A, L.H, L.X1P, 'M1', 'M2')
        lay(A, S_R1, L.Y)
        A(f's_add_u32 s{S_DST}, s{S_DST}, s{S_T3}\ns_add_u32 s{S_R1}, s{S_R1}, s{S_T3}')
        return dict(srcblk=L.BLK, dstblk=L.BLK, ndep=5, depadd=2, nres=1)
    gen_gemm(A, 'RM2', 40, 1, 'T', 0, 'store', wsel_simple(72, 819200, 1280, offj), shift=True, setup=setup_m2)
    def setup_m3(A, g):
        common(A, L.X1P, L.H2, 'M2', 'M3')
        A(f's_add_u32 s{S_DST}, s{S_DST}, s{S_T3}')
        return dict(srcblk=L.BLK, dstblk=L.H2BLK, ndep=5)
    gen_gemm(A, 'RM3', 40, 1, 'T', 1, 'gelu', wsel_simple(80, 640 * 3456, 3456, offj), setup=setup_m3)
    def setup_m4(A, g):
        common(A, L.H2, L.X, 'M3', 'M4', bstep=2)
        lay(A, S_R1, L.X1P); lay(A, S_R2, L.X1)
        l0, l1 = A.label('G'), A.label('G')
        T = g.T
        A(f'''
        s_add_u32 s{S_R1}, s{S_R1}, s{S_T3}
        s_add_u32 s{S_R2}, s{S_R2}, s{S_T3}
        s_mov_b32 s{S_B}, s{S_GRP}
        s_lshl_b32 s{S_T0}, s{S_GRP}, 8
        s_add_u32 s{S_FLAG}, s{S_FLAG}, s{S_T0}
        s_mov_b32 s{S_DST2}, {L.BLK}
        s_cmp_eq_u32 s{S_LAYER}, 0
        s_cbranch_scc0 {l0}
        s_add_u32 s{S_DST}, s{S_T3}, {L.X(1)}
        s_mov_b32 s8, s4
        s_mov_b32 s9, s5
        s_mov_b32 s10, {L.WS_BYTES}
        s_branch {l1}
        {l0}:
        s_load_dwordx2 s[8:9], s[0:1], 96
        s_mov_b32 s10, {2048*1280}
        s_lshl_b32 s{S_DST}, s{S_IDX}, 8
        v_mul_u32_u24 v{g.V_OUT}, 1280, v{T+1}
        v_lshl_add_u32 v{g.V_OUT}, v{T+2}, 4, v{g.V_OUT}
        s_lshl_b32 s{S_T0}, s{S_WAVE}, 6
        v_add_u32 v{g.V_OUT}, s{S_T0}, v{g.V_OUT}
        v_add_u32 v{g.V_OUT2}, 32, v{g.V_OUT}
        s_waitcnt lgkmcnt(0)
        {l1}:
        ''')
        return dict(srcblk=L.H2BLK, dstblk=L.BLK, ndep=14, nres=2, dyndst=True)
    gen_gemm(A, 'RM4', 108, 1, 'T', 0, 'store', wsel_simple(88, 1728 * 1280, 1280, offj), dbuf=False, setup=setup_m4)

def gen_rl(A):
    V_L16, V_DEP, V_FL, T = 0, 1, 2, 4
    B0 = 16
    AC = 64
    A(f'''
    RRL:
    v_mbcnt_lo_u32_b32 v{T}, -1, 0
    v_mbcnt_hi_u32_b32 v{T}, -1, v{T}
    v_lshlrev_b32 v{V_L16}, 4, v{T}
    v_min_u32 v{V_DEP}, 3, v{T}
    v_lshlrev_b32 v{V_DEP}, 2, v{V_DEP}
    v_mov_b32 v{V_FL}, 0
    ''')
    lay(A, S_SRC, L.OP); lay(A, S_R1, L.X); lay(A, S_DST, L.X1)
    lay(A, S_DEP, lambda l: L.flag('O', l)); lay(A, S_FLAG, lambda l: L.flag('RL', l))
    A(f'''
    s_lshl_b32 s{S_T0}, s{S_IDX}, 4
    s_add_u32 s{S_DEP}, s{S_DEP}, s{S_T0}
    s_add_u32 s{S_FLAG}, s{S_FLAG}, s{S_T0}
    s_lshl_b32 s{S_T0}, s{S_WAVE}, 2
    s_add_u32 s{S_FLAG}, s{S_FLAG}, s{S_T0}
    s_lshl_b32 s{S_T0}, s{S_IDX}, 13
    s_lshl_b32 s{S_T1}, s{S_WAVE}, 11
    s_add_u32 s{S_T0}, s{S_T0}, s{S_T1}
    v_add_u32 v{V_L16}, s{S_T0}, v{V_L16}
    s_mov_b32 s{S_B}, 0
    RRL_loop:
    s_add_u32 s{S_NEED}, s{S_B}, 1
    ''')
    poll(A, T, V_DEP, S_DEP, S_NEED)
    A(f's_mov_b32 s{S_T0}, s{S_SRC}')
    for k in range(5):
        so = S_T0 if k < 4 else S_R1
        A(f'buffer_load_dwordx4 v[{B0+8*k}:{B0+8*k+3}], v{V_L16}, s[4:7], s{so} offen sc1')
        A(f'buffer_load_dwordx4 v[{B0+8*k+4}:{B0+8*k+7}], v{V_L16}, s[4:7], s{so} offen offset:1024 sc1')
        if k < 3:
            A(f's_add_u32 s{S_T0}, s{S_T0}, {L.OPK}')
    for k in range(5):
        A(f's_waitcnt vmcnt({8-2*k})')
        for j in range(8):
            x = B0 + 8 * k + j
            if k == 0:
                A(f'v_lshlrev_b32 v{AC+2*j}, 16, v{x}\nv_and_b32 v{AC+2*j+1}, 0xffff0000, v{x}')
            else:
                A(f'v_lshlrev_b32 v{T}, 16, v{x}\nv_and_b32 v{T+1}, 0xffff0000, v{x}')
                A(f'v_pk_add_f32 v[{AC+2*j}:{AC+2*j+1}], v[{AC+2*j}:{AC+2*j+1}], v[{T}:{T+1}]')
    for j in range(8):
        A(f'v_cvt_pk_bf16_f32 v{AC+j}, v{AC+2*j}, v{AC+2*j+1}')
    A(f'''
    buffer_store_dwordx4 v[{AC}:{AC+3}], v{V_L16}, s[4:7], s{S_DST} offen sc1
    buffer_store_dwordx4 v[{AC+4}:{AC+7}], v{V_L16}, s[4:7], s{S_DST} offen offset:1024 sc1
    v_mov_b32 v{T}, s{S_NEED}
    s_waitcnt vmcnt(0)
    s_mov_b64 exec, 1
    buffer_store_dword v{T}, v{V_FL}, s[4:7], s{S_FLAG} offen sc1
    s_mov_b64 exec, -1
    s_add_u32 s{S_SRC}, s{S_SRC}, {L.BLK}
    s_add_u32 s{S_R1}, s{S_R1}, {L.BLK}
    s_add_u32 s{S_DST}, s{S_DST}, {L.BLK}
    s_add_u32 s{S_B}, s{S_B}, 1
    s_cmp_lt_u32 s{S_B}, 64
    s_cbranch_scc1 RRL_loop
    s_branch L_next
    ''')

def gen_at(A):
    V_L16, V_DEP, V_FL, V_KM, V_VM, T = 0, 1, 2, 3, 4, 6
    BIAS, SX, SM, QF, KF, VF, KMF, VMF, OA = 16, 32, 48, 64, 96, 128, 160, 192, 200
    OA = [QF, QF + 16, KF, KF + 16]
    S_H, S_Q, S_KM, S_RF = S_R1, S_SRC, S_R2, S_DST2
    A(f'''
    RAT:
    v_mbcnt_lo_u32_b32 v{T}, -1, 0
    v_mbcnt_hi_u32_b32 v{T}, -1, v{T}
    v_lshlrev_b32 v{V_L16}, 4, v{T}
    s_lshl_b32 s{S_H}, s{S_IDX}, 2
    s_add_u32 s{S_H}, s{S_H}, s{S_WAVE}          ; head
    v_min_u32 v{V_DEP}, 2, v{T}
    v_lshlrev_b32 v{V_DEP}, 6, v{V_DEP}
    s_lshr_b32 s{S_T0}, s{S_H}, 1
    s_lshl_b32 s{S_T0}, s{S_T0}, 2
    v_add_u32 v{V_DEP}, s{S_T0}, v{V_DEP}
    v_mov_b32 v{V_FL}, 0
    v_and_b32 v{T+1}, 31, v{T}                   ; t / i
    v_lshrrev_b32 v{T+2}, 5, v{T}                ; hf
    v_and_b32 v{T+3}, 7, v{T}
    v_lshlrev_b32 v{V_KM}, 8, v{T+3}
    v_lshl_add_u32 v{V_KM}, v{T+2}, 4, v{V_KM}
    v_and_b32 v{T+3}, 0x13, v{T+1}
    v_bfe_u32 v{T+4}, v{T+1}, 2, 1
    v_lshl_add_u32 v{T+3}, v{T+4}, 3, v{T+3}
    v_bfe_u32 v{T+4}, v{T+1}, 3, 1
    v_lshl_add_u32 v{T+3}, v{T+4}, 2, v{T+3}
    v_lshlrev_b32 v{V_VM}, 4, v{T+3}
    v_lshl_add_u32 v{V_VM}, v{T+2}, 3, v{V_VM}
    v_lshlrev_b32 v{T+3}, 2, v{T+2}
    v_sub_u32 v{T+3}, v{T+1}, v{T+3}
    v_mov_b32 v{T+4}, {fh(-1e30)}
    ''')
    for rr in range(16):
        key = 8 * (rr >> 2) + (rr & 3)
        A(f'v_cmp_gt_i32 vcc, {key}, v{T+3}\ns_nop 1\nv_cndmask_b32 v{BIAS+rr}, 0, v{T+4}, vcc')
    lay(A, S_Q, L.Q); lay(A, S_KM, L.KM); lay(A, S_DST, L.O)
    lay(A, S_DEP, lambda l: L.flag('QKV', l)); lay(A, S_RF, lambda l: L.flag('R', l)); lay(A, S_FLAG, lambda l: L.flag('AT', l))
    A(f'''
    s_lshl_b32 s{S_T0}, s{S_H}, 13
    s_add_u32 s{S_Q}, s{S_Q}, s{S_T0}
    s_add_u32 s{S_DST}, s{S_DST}, s{S_T0}
    s_lshl_b32 s{S_T0}, s{S_H}, 11
    s_add_u32 s{S_KM}, s{S_KM}, s{S_T0}
    s_lshl_b32 s{S_T0}, s{S_H}, 2
    s_add_u32 s{S_RF}, s{S_RF}, s{S_T0}
    s_add_u32 s{S_FLAG}, s{S_FLAG}, s{S_T0}
    s_sub_u32 s{S_DEPM}, 1, s{S_LAYER}
    s_mov_b32 s{S_C0}, {fh(128 ** -0.5 * math.log2(math.e))}
    s_mov_b32 s{S_B}, 0
    RAT_loop:
    s_add_u32 s{S_NEED}, s{S_B}, 1
    s_and_b32 s{S_T1}, s{S_B}, s{S_DEPM}
    s_lshl_b32 s{S_T1}, s{S_T1}, 8
    s_add_u32 s{S_T1}, s{S_T1}, s{S_DEP}
    ''')
    poll(A, T, V_DEP, S_T1, S_NEED)
    vm = Sb(A, 'vmcnt', 63)
    tk = {}
    A(f's_add_u32 s{S_T1}, s{S_Q}, {16*L.MB}\ns_add_u32 s{S_T2}, s{S_Q}, 4096\ns_add_u32 s{S_T3}, s{S_T1}, 4096')
    for s_ in range(8):
        vm.issue(f'buffer_load_dwordx4 v[{QF+4*s_}:{QF+4*s_+3}], v{V_L16}, s[4:7], s{S_Q if s_<4 else S_T2} offen offset:{(s_%4)*1024} sc1')
        tk[s_] = vm.issue(f'buffer_load_dwordx4 v[{KF+4*s_}:{KF+4*s_+3}], v{V_L16}, s[4:7], s{S_T1 if s_<4 else S_T3} offen offset:{(s_%4)*1024} sc1')
    A(f's_add_u32 s{S_T1}, s{S_Q}, {32*L.MB}\ns_add_u32 s{S_T3}, s{S_T1}, 4096')
    for s_ in range(8):
        vm.issue(f'buffer_load_dwordx4 v[{VF+4*s_}:{VF+4*s_+3}], v{V_L16}, s[4:7], s{S_T1 if s_<4 else S_T3} offen offset:{(s_%4)*1024} sc1')
    for s_ in range(8):
        vm.wait(tk[s_])
        c = v(BIAS, 16) if s_ == 0 else v(SX, 16)
        A(f'v_mfma_f32_32x32x16_bf16 {v(SX,16)}, v[{KF+4*s_}:{KF+4*s_+3}], v[{QF+4*s_}:{QF+4*s_+3}], {c}')
    poll(A, T, V_FL, S_RF, S_NEED)
    vm.reset()
    for s_ in range(8):
        tk[s_] = vm.issue(f'buffer_load_dwordx4 v[{KMF+4*s_}:{KMF+4*s_+3}], v{V_KM}, s[4:7], s{S_KM} offen offset:{32*s_} sc1')
    A(f's_add_u32 s{S_T1}, s{S_KM}, {L.VM(0)-L.KM(0)}')
    for e in range(4):
        tv = vm.issue(f'buffer_load_dwordx2 v[{VMF+2*e}:{VMF+2*e+1}], v{V_VM}, s[4:7], s{S_T1} offen offset:{512*e} sc1')
    M0, M1 = T, T + 1
    A(f'v_max3_f32 v{M0}, v{SX}, v{SX+1}, v{SX+2}\nv_max3_f32 v{M1}, v{SX+3}, v{SX+4}, v{SX+5}')
    for i in range(6, 16, 4):
        A(f'v_max3_f32 v{M0}, v{M0}, v{SX+i}, v{SX+i+1}')
        if i + 3 < 16:
            A(f'v_max3_f32 v{M1}, v{M1}, v{SX+i+2}, v{SX+i+3}')
    for s_ in range(8):
        vm.wait(tk[s_])
        c = '0' if s_ == 0 else v(SM, 16)
        A(f'v_mfma_f32_32x32x16_bf16 {v(SM,16)}, v[{KMF+4*s_}:{KMF+4*s_+3}], v[{QF+4*s_}:{QF+4*s_+3}], {c}')
    A(f'''
    s_nop 15
    v_max3_f32 v{M0}, v{M0}, v{SM}, v{SM+1}
    v_max3_f32 v{M1}, v{M1}, v{SM+2}, v{SM+3}
    v_max_f32 v{M0}, v{M0}, v{M1}
    v_mov_b32 v{M1}, v{M0}
    s_nop 1
    v_permlane32_swap_b32 v{M0}, v{M1}
    v_max_f32 v{M0}, v{M0}, v{M1}
    v_mul_f32 v{M0}, s{S_C0}, v{M0}
    ''')
    SV = [SX + i for i in range(16)] + [SM + i for i in range(4)]
    for x in SV: A(f'v_fma_f32 v{x}, v{x}, s{S_C0}, -v{M0}')
    for x in SV: A(f'v_exp_f32 v{x}, v{x}')
    A(f's_nop 0\nv_add_f32 v{M0}, v{SV[0]}, v{SV[1]}\nv_add_f32 v{M1}, v{SV[2]}, v{SV[3]}')
    for i in range(4, 20, 2):
        A(f'v_add_f32 v{M0}, v{M0}, v{SV[i]}\nv_add_f32 v{M1}, v{M1}, v{SV[i+1]}')
    A(f'''
    v_add_f32 v{M0}, v{M0}, v{M1}
    v_mov_b32 v{M1}, v{M0}
    s_nop 1
    v_permlane32_swap_b32 v{M0}, v{M1}
    v_add_f32 v{M0}, v{M0}, v{M1}
    v_rcp_f32 v{M0}, v{M0}
    s_nop 0
    ''')
    for x in SV: A(f'v_mul_f32 v{x}, v{x}, v{M0}')
    for j in range(8): A(f'v_cvt_pk_bf16_f32 v{SX+j}, v{SX+2*j}, v{SX+2*j+1}')
    for j in range(2): A(f'v_cvt_pk_bf16_f32 v{SM+j}, v{SM+2*j}, v{SM+2*j+1}')
    vm.wait(tv)
    A('s_nop 1')
    for e in range(4):
        o = v(OA[e], 16)
        A(f'v_mfma_f32_32x32x16_bf16 {o}, v[{VF+8*e}:{VF+8*e+3}], v[{SX}:{SX+3}], 0')
        A(f'v_mfma_f32_32x32x16_bf16 {o}, v[{VF+8*e+4}:{VF+8*e+7}], v[{SX+4}:{SX+7}], {o}')
        A(f'v_mfma_f32_32x32x8_bf16 {o}, v[{VMF+2*e}:{VMF+2*e+1}], v[{SM}:{SM+1}], {o}')
    A(f's_add_u32 s{S_T1}, s{S_DST}, 4096\ns_nop 3')
    for e in range(4):
        if e == 3: A('s_nop 3')
        for j in range(8): A(f'v_cvt_pk_bf16_f32 v{OA[e]+j}, v{OA[e]+2*j}, v{OA[e]+2*j+1}')
        so = S_DST if e < 2 else S_T1
        A(f'buffer_store_dwordx4 v[{OA[e]}:{OA[e]+3}], v{V_L16}, s[4:7], s{so} offen offset:{(e%2)*2048} sc1')
        A(f'buffer_store_dwordx4 v[{OA[e]+4}:{OA[e]+7}], v{V_L16}, s[4:7], s{so} offen offset:{(e%2)*2048+1024} sc1')
    A(f'''
    v_mov_b32 v{T}, s{S_NEED}
    s_waitcnt vmcnt(0)
    s_mov_b64 exec, 1
    buffer_store_dword v{T}, v{V_FL}, s[4:7], s{S_FLAG} offen sc1
    s_mov_b64 exec, -1
    s_add_u32 s{S_Q}, s{S_Q}, 262144
    s_add_u32 s{S_DST}, s{S_DST}, 262144
    s_add_u32 s{S_KM}, s{S_KM}, 65536
    s_add_u32 s{S_B}, s{S_B}, 1
    s_cmp_lt_u32 s{S_B}, 64
    s_cbranch_scc1 RAT_loop
    s_branch L_next
    ''')
```

```python
MB = 1 << 20
NB = 64
WS_BYTES = 256 * MB
BLK = 40960
def Q(l):  return (0 + 48 * l) * MB
def KX(l): return (16 + 48 * l) * MB
def VX(l): return (32 + 48 * l) * MB
def O(l):  return (96 + 16 * l) * MB
def KM(l): return (128 + 8 * l) * MB
def VM(l): return (132 + 8 * l) * MB
RS = 144 * MB
def R_INBOX(l): return RS + 8 * MB * l
def R_MEM(l):   return RS + 8 * MB * l + 1 * MB
def R_STREAM(l): return RS + 8 * MB * l + 2 * MB
FLAGS = 160 * MB
AB = 164 * MB
def X(l):   return AB + 40 * MB * l
def X1(l):  return AB + 40 * MB * l + 3 * MB
def Y(l):   return AB + 40 * MB * l + 6 * MB
def X1P(l): return AB + 40 * MB * l + 9 * MB
def H(l):   return AB + 40 * MB * l + 12 * MB
def H2(l):  return AB + 40 * MB * l + 16 * MB
def OP(l):  return AB + 40 * MB * l + 24 * MB
H2BLK = 112 * 1024
OPK = 64 * BLK
FL = dict(QKV=0, R=2, AT=3, O=4, RL=5, M1=6, M2=7, M3=8, M4=9)
FLAYER = 4096
def flag(name, l=0, grp=0): return FLAGS + FLAYER * l + 256 * (FL[name] + grp)
```

```python
from asm import *
import layout as L
import math, os
OPT=dict(x.split('=') for x in os.environ.get('ROPT','').split(',') if x)

V_L16, V_IDX, V_SELT, V_PUBA, V_PUBC, V_PUB2, V_GATH = 0, 1, 2, 4, 5, 6, 7
V_SWR, V_SRD, V_OWR, V_KXO, V_VXO, V_KMO, V_VMO, V_WLDS = 8, 9, 10, 11, 12, 13, 14, 15
P = 16
AS = 56
FR = 64
LDS_MEM = 0
LDS_S = 10240
LDS_SELR = 15360
LDS_W = 16384
S_WAVE, S_P, S_LAYER = 12, 13, 14
S_T, S_INB, S_RED, S_MCUR, S_MRE, S_GOFF, S_KX, S_VX, S_KM, S_VM, S_STR, S_UNIT, S_SPIN, S_ERR = range(16, 30)
S_T0, S_T1, S_T2, S_T3 = 30, 31, 32, 33
S_G1K, S_MBASE, S_FLAG, S_KVF, S_KVM = 34, 35, 36, 37, 38
S_MV, S_MK, S_MP, S_SC = 40, 42, 44, 46
S_ST = 60
SPIN_CAP = 1 << 14

def frag_classes():
    lds_qk1 = [('q', 0, 0), ('q', 0, 1), ('k', 0, 0), ('k', 0, 1), ('q', 1, 0), ('q', 1, 1)]
    lds_qk2 = [('q', 4, 0), ('q', 4, 1), ('k', 4, 0), ('k', 4, 1), ('q', 5, 0), ('q', 5, 1)]
    l2_v = [('v', s, t) for s in (7, 8, 9) for t in (0, 1)]
    l2_o = [('o', 0, t) for t in range(4, 10)]
    lds_o = [('o', 1, t) for t in range(4, 10)]
    return lds_qk1, lds_qk2, l2_v, l2_o, lds_o

def gen_R(A, NSTEP=64, stamps=False, hop_sc='', kvflags=False, pfx='R'):
    lds_qk1, lds_qk2, l2_v, l2_o, lds_o = frag_classes()
    seqs = [lds_qk1, lds_qk2, l2_v, l2_o, lds_o]
    lds_list = lds_qk1 + lds_qk2 + lds_o
    l2_list = l2_v + l2_o
    allf = [(m, s, t) for m in 'qkv' for s in range(10) for t in (0, 1)] + [('o', s, t) for s in (0, 1) for t in range(10)]
    res = [f for f in allf if f not in lds_list and f not in l2_list]
    assert len(res) == 50
    slot_reg = [FR + 8 * (50 + i) for i in range(6)]
    reg_of = {f: FR + 8 * i for i, f in enumerate(res)}
    slot_of = {}
    nxt = {}
    for k, sq in enumerate(seqs):
        for i, f in enumerate(sq):
            slot_of[f] = i
            nxt[f] = seqs[(k + 1) % len(seqs)][i]
    vm = Sb(A, 'vmcnt', 63)
    lg = Sb(A, 'lgkmcnt', 15)
    nst = [0]
    def stamp(k):
        if stamps:
            lg.waitall()
            A(f'''s_memtime s[76:77]
            s_waitcnt lgkmcnt(0)
            s_sub_u32 s79, s76, s78
            s_add_u32 s{S_ST+k}, s{S_ST+k}, s79
            s_mov_b32 s78, s76''')

    T = P
    A(f'''
    v_mbcnt_lo_u32_b32 v{T}, -1, 0
    v_mbcnt_hi_u32_b32 v{T}, -1, v{T}
    v_and_b32 v{T+1}, 15, v{T}             ; c / n / i
    v_lshrrev_b32 v{T+2}, 4, v{T}          ; g
    v_lshlrev_b32 v{V_L16}, 4, v{T}
    ; idx
    v_and_b32 v{T+3}, 1, v{T}
    v_mov_b32 v{V_IDX}, 0x44444444
    v_mov_b32 v{T+4}, 0xeeeeeeee
    v_cmp_eq_u32 vcc, 1, v{T+3}
    s_nop 1
    v_cndmask_b32 v{V_IDX}, v{V_IDX}, v{T+4}, vcc
    v_lshlrev_b32 v{T+4}, 2, v{T+2}
    v_sub_u32 v{T+4}, v{T+1}, v{T+4}       ; n-4g
    v_mov_b32 v{T+5}, 0x3f80
    v_mov_b32 v{T+6}, 0x3f800000
    ''')
    for d in range(2):
        A(f'''
        v_mov_b32 v{V_SELT+d}, 0
        v_cmp_eq_u32 vcc, {2*d}, v{T+4}
        s_nop 1
        v_cndmask_b32 v{V_SELT+d}, v{V_SELT+d}, v{T+5}, vcc
        v_cmp_eq_u32 vcc, {2*d+1}, v{T+4}
        s_nop 1
        v_cndmask_b32 v{V_SELT+d}, v{V_SELT+d}, v{T+6}, vcc
        ''')
    for d in range(4):
        A(f'''
        v_mov_b32 v{T+8+d}, 0
        v_cmp_eq_u32 vcc, {d}, v{T+1}
        s_nop 1
        v_cndmask_b32 v{T+8+d}, v{T+8+d}, v{T+5}, vcc
        v_cmp_eq_u32 vcc, {4+d}, v{T+1}
        s_nop 1
        v_cndmask_b32 v{T+8+d}, v{T+8+d}, v{T+6}, vcc
        ''')
    A(f'ds_write_b128 v{V_L16}, v[{T+8}:{T+11}] offset:{LDS_SELR}')
    A(f'''
    ; pubA = (w*20 + (l>>3))*4096 + p*128 + (l&7)*16
    s_mul_i32 s{S_T0}, s{S_WAVE}, {20*4096}
    s_lshl_b32 s{S_T1}, s{S_P}, 7
    s_add_u32 s{S_T0}, s{S_T0}, s{S_T1}
    v_lshrrev_b32 v{T+4}, 3, v{T}
    v_lshlrev_b32 v{T+4}, 12, v{T+4}
    v_and_b32 v{T+5}, 7, v{T}
    v_lshlrev_b32 v{T+6}, 4, v{T+5}
    v_add3_u32 v{V_PUBA}, v{T+4}, v{T+6}, s{S_T0}
    v_lshlrev_b32 v{T+4}, 12, v{T+2}
    v_lshlrev_b32 v{T+6}, 3, v{T+1}
    s_add_u32 s{S_T0}, s{S_T0}, {16*4096}
    v_add3_u32 v{V_PUBC}, v{T+4}, v{T+6}, s{S_T0}
    ; unit
    s_lshl_b32 s{S_UNIT}, s{S_WAVE}, 5
    s_add_u32 s{S_UNIT}, s{S_UNIT}, s{S_P}
    s_mul_i32 s{S_T0}, s{S_UNIT}, 3277
    s_lshr_b32 s{S_T0}, s{S_T0}, 16          ; uw
    s_mul_i32 s{S_T1}, s{S_T0}, 20
    s_sub_u32 s{S_T1}, s{S_UNIT}, s{S_T1}    ; ui
    s_mul_i32 s{S_T0}, s{S_T0}, 160
    s_cmp_lt_u32 s{S_T1}, 16
    s_cbranch_scc0 {pfx}_kc
    s_lshr_b32 s{S_T2}, s{S_T1}, 3
    s_lshl_b32 s{S_T2}, s{S_T2}, 6
    s_add_u32 s{S_T0}, s{S_T0}, s{S_T2}
    s_and_b32 s{S_T2}, s{S_T1}, 1
    s_lshl_b32 s{S_T2}, s{S_T2}, 5
    s_add_u32 s{S_T0}, s{S_T0}, s{S_T2}
    s_and_b32 s{S_T1}, s{S_T1}, 7
    s_lshr_b32 s{S_T1}, s{S_T1}, 1           ; g
    s_branch {pfx}_kd
    {pfx}_kc:
    s_sub_u32 s{S_T1}, s{S_T1}, 16
    s_add_u32 s{S_T0}, s{S_T0}, 128
    {pfx}_kd:
    s_lshl_b32 s{S_T0}, s{S_T0}, 1
    s_mul_i32 s{S_T1}, s{S_T1}, 2560
    s_add_u32 s{S_T0}, s{S_T0}, s{S_T1}
    v_mul_u32_u24 v{T+4}, 1280, v{T+2}
    v_lshlrev_b32 v{T+6}, 3, v{T+5}
    v_add3_u32 v{V_PUB2}, v{T+4}, v{T+6}, s{S_T0}
    v_lshrrev_b32 v{T+4}, 1, v{T+1}
    v_mul_u32_u24 v{T+4}, 1280, v{T+4}
    v_lshlrev_b32 v{T+6}, 5, v{T+2}
    v_lshlrev_b32 v{T+7}, 4, v{T+3}
    v_add3_u32 v{V_GATH}, v{T+4}, v{T+6}, v{T+7}
    ; ci = (l>>2)*2 + (l&1)
    v_lshrrev_b32 v{T+4}, 2, v{T}
    v_lshl_add_u32 v{T+4}, v{T+4}, 1, v{T+3}
    v_lshlrev_b32 v{T+4}, 4, v{T+4}          ; ci*16
    s_lshr_b32 s{S_T0}, s{S_WAVE}, 1
    s_mul_i32 s{S_T0}, s{S_T0}, 2560
    s_and_b32 s{S_T1}, s{S_WAVE}, 1
    s_lshl_b32 s{S_T2}, s{S_T1}, 3
    s_add_u32 s{S_T0}, s{S_T0}, s{S_T2}
    s_add_u32 s{S_T0}, s{S_T0}, {LDS_S}
    v_add_u32 v{V_SWR}, s{S_T0}, v{T+4}
    v_bfe_u32 v{T+6}, v{T}, 1, 1
    v_mul_u32_u24 v{T+6}, 2560, v{T+6}
    v_add_u32 v{V_SRD}, v{T+4}, v{T+6}
    v_add_u32 v{V_SRD}, {LDS_S}, v{V_SRD}
    ; m = 2*(n>>2) + (n&1)
    v_lshrrev_b32 v{T+4}, 2, v{T+1}
    v_lshl_add_u32 v{T+4}, v{T+4}, 1, v{T+3}
    ; owr = (w>>1)*1024 + (16*(2*(w&1) + (g>>1)) + 2m + (g&1))*16
    v_lshrrev_b32 v{T+6}, 1, v{T+2}             ; g>>1
    v_and_b32 v{T+7}, 1, v{T+2}                 ; g&1
    v_lshlrev_b32 v{T+8}, 4, v{T+6}
    v_lshl_add_u32 v{T+8}, v{T+4}, 1, v{T+8}
    v_add_u32 v{T+8}, v{T+8}, v{T+7}
    v_lshlrev_b32 v{T+8}, 4, v{T+8}
    s_lshl_b32 s{S_T0}, s{S_WAVE}, 9            ; (w>>1)*1024 + (w&1)*512
    v_add_u32 v{V_OWR}, s{S_T0}, v{T+8}
    v_lshlrev_b32 v{T+8}, 8, v{T+4}
    v_lshl_add_u32 v{T+8}, v{T+2}, 4, v{T+8}
    s_lshl_b32 s{S_T0}, s{S_WAVE}, 6
    v_add_u32 v{V_KMO}, s{S_T0}, v{T+8}
    v_lshlrev_b32 v{T+8}, 5, v{T+1}
    v_lshl_add_u32 v{T+8}, v{T+2}, 2, v{T+8}
    s_lshl_b32 s{S_T0}, s{S_WAVE}, 9
    v_add_u32 v{V_VMO}, s{S_T0}, v{T+8}
    v_lshrrev_b32 v{T+8}, 3, v{T+1}             ; gi>>1
    v_lshlrev_b32 v{T+8}, 4, v{T+8}
    v_and_b32 v{T+9}, 7, v{T+1}                 ; 4(gi&1)+b
    v_add_u32 v{T+8}, v{T+8}, v{T+9}
    v_lshl_add_u32 v{T+8}, v{T+7}, 5, v{T+8}    ; + 32hf
    v_lshlrev_b32 v{T+8}, 4, v{T+8}
    v_lshl_add_u32 v{T+8}, v{T+6}, 10, v{T+8}
    s_lshl_b32 s{S_T0}, s{S_WAVE}, 11
    v_add_u32 v{V_KXO}, s{S_T0}, v{T+8}
    v_and_b32 v{T+8}, 9, v{T+1}
    v_bfe_u32 v{T+9}, v{T+1}, 1, 1
    v_lshl_add_u32 v{T+8}, v{T+9}, 2, v{T+8}
    v_bfe_u32 v{T+9}, v{T+1}, 2, 1
    v_lshl_add_u32 v{T+8}, v{T+9}, 1, v{T+8}
    v_lshlrev_b32 v{T+8}, 1, v{T+8}
    v_lshl_add_u32 v{T+8}, v{T+7}, 5, v{T+8}
    v_lshlrev_b32 v{T+8}, 4, v{T+8}
    v_lshl_add_u32 v{T+8}, v{T+6}, 10, v{T+8}
    v_add_u32 v{V_VXO}, s{S_T0}, v{T+8}
    ; wlds
    s_mul_i32 s{S_T0}, s{S_WAVE}, {18*2048}
    s_add_u32 s{S_T0}, s{S_T0}, {LDS_W}
    v_add_u32 v{V_WLDS}, s{S_T0}, v{V_L16}
    s_mul_i32 s{S_T0}, s{S_LAYER}, {L.R_INBOX(1)-L.R_INBOX(0)}
    s_add_u32 s{S_INB}, s{S_T0}, {L.R_INBOX(0)}
    s_lshl_b32 s{S_T1}, s{S_UNIT}, 12
    s_add_u32 s{S_RED}, s{S_INB}, s{S_T1}
    s_add_u32 s{S_MBASE}, s{S_T0}, {L.R_MEM(0)}
    s_mov_b32 s{S_MCUR}, 0
    s_mov_b32 s{S_MRE}, {2*10240}
    s_mul_i32 s{S_T1}, s{S_WAVE}, 3
    s_min_u32 s{S_T1}, s{S_T1}, 7
    s_lshl_b32 s{S_GOFF}, s{S_T1}, 7
    s_lshl_b32 s{S_G1K}, s{S_T1}, 10
    s_mul_i32 s{S_T1}, s{S_P}, {48*2048}
    s_mul_i32 s{S_T2}, s{S_WAVE}, {12*2048}
    s_add_u32 s{S_T1}, s{S_T1}, s{S_T2}
    s_add_u32 s{S_STR}, s{S_T0}, s{S_T1}
    s_add_u32 s{S_STR}, s{S_STR}, {L.R_STREAM(0)}
    s_mul_i32 s{S_T0}, s{S_LAYER}, {L.KX(1)-L.KX(0)}
    s_lshl_b32 s{S_T1}, s{S_P}, 13
    s_add_u32 s{S_T0}, s{S_T0}, s{S_T1}
    s_add_u32 s{S_KX}, s{S_T0}, {L.KX(0)}
    s_add_u32 s{S_VX}, s{S_T0}, {L.VX(0)}
    s_mul_i32 s{S_T0}, s{S_LAYER}, {L.KM(1)-L.KM(0)}
    s_lshl_b32 s{S_T1}, s{S_P}, 11
    s_add_u32 s{S_T0}, s{S_T0}, s{S_T1}
    s_add_u32 s{S_KM}, s{S_T0}, {L.KM(0)}
    s_add_u32 s{S_VM}, s{S_T0}, {L.VM(0)}
    s_mul_i32 s{S_T0}, s{S_LAYER}, {L.FLAYER}
    s_lshl_b32 s{S_T1}, s{S_P}, 2
    s_add_u32 s{S_FLAG}, s{S_T0}, s{S_T1}
    s_add_u32 s{S_FLAG}, s{S_FLAG}, {L.flag('R')}
    s_lshr_b32 s{S_T1}, s{S_P}, 1
    s_lshl_b32 s{S_T1}, s{S_T1}, 2
    s_add_u32 s{S_KVF}, s{S_T0}, s{S_T1}
    s_add_u32 s{S_KVF}, s{S_KVF}, {L.flag('QKV') + 64}
    s_sub_u32 s{S_KVM}, 1, s{S_LAYER}
    s_lshl_b32 s{S_KVM}, s{S_KVM}, 8
    s_mov_b32 s{S_MV}, 0xcccccccc
    s_mov_b32 s{S_MV+1}, 0xcccccccc
    s_mov_b32 s{S_MK}, 0x33333333
    s_mov_b32 s{S_MK+1}, 0x33333333
    s_mov_b32 s{S_MP}, 0x00ff00ff
    s_mov_b32 s{S_MP+1}, 0
    s_mov_b32 s{S_SC}, {hex(f32bits(128 ** -0.5 * math.log2(math.e)))}
    s_mov_b32 s{S_ERR}, 0
    s_mov_b32 s{S_T}, 0
    s_mov_b32 s48, 0x05040100
    s_mov_b32 s49, 0x07060302
    ''')
    WQ = T + 12
    WO4 = T + 13
    WO2 = T + 14
    A(f'''
    v_lshlrev_b32 v{T+8}, 4, v{T+6}
    v_lshl_add_u32 v{T+8}, v{T+7}, 2, v{T+8}
    v_lshlrev_b32 v{T+9}, 13, v{T+8}
    v_lshl_add_u32 v{T+9}, v{T+1}, 2, v{T+9}
    s_lshl_b32 s{S_T0}, s{S_P}, 8
    s_lshl_b32 s{S_T1}, s{S_WAVE}, 6
    s_add_u32 s{S_T0}, s{S_T0}, s{S_T1}
    v_add_u32 v{WQ}, s{S_T0}, v{T+9}
    v_mul_u32_u24 v{T+9}, 1280, v{T+8}
    s_mul_i32 s{S_T0}, s{S_P}, 163840
    s_mul_i32 s{S_T1}, s{S_WAVE}, 320
    s_add_u32 s{S_T0}, s{S_T0}, s{S_T1}
    v_lshl_add_u32 v{T+10}, v{T+1}, 3, v{T+9}
    v_add_u32 v{WO4}, s{S_T0}, v{T+10}
    v_lshl_add_u32 v{T+10}, v{T+1}, 2, v{T+9}
    v_add_u32 v{WO2}, s{S_T0}, v{T+10}
    v_add_u32 v{WO2}, 256, v{WO2}
    s_load_dwordx2 s[50:51], s[0:1], 16
    s_load_dwordx2 s[52:53], s[0:1], 24
    s_load_dwordx2 s[54:55], s[0:1], 32
    s_load_dwordx2 s[56:57], s[0:1], 40
    s_load_dwordx2 s[58:59], s[0:1], 8
    s_waitcnt lgkmcnt(0)
    s_mov_b32 s10, 5242880
    s_mov_b32 s11, 0x20000
    ''')
    lg.reset()
    cur_srd = [None]
    def set_srd(m):
        if cur_srd[0] != m:
            b = {'q': 50, 'k': 52, 'v': 54, 'o': 56}[m]
            A(f's_mov_b32 s8, s{b}\ns_mov_b32 s9, s{b+1}')
            cur_srd[0] = m
    def rowoff(s, i):
        hb, jd = i >> 2, i & 3
        return 64 * s + 32 * hb + 8 * (jd & 1) + 2 * (jd >> 1)
    groups = []
    for m in 'qkv':
        for s in range(10):
            groups.append([(m, s, 0), (m, s, 1)])
    for s in (0, 1):
        groups.append([('o', s, t) for t in range(0, 4)])
        groups.append([('o', s, t) for t in range(4, 8)])
        groups.append([('o', s, t) for t in (8, 9)])
    def cls(g):
        if g[0] not in reg_of: return 0
        return 1 if reg_of[g[0]] >= 256 and reg_of[g[-1]] >= 256 else 2
    groups.sort(key=cls)
    TMPA = FR
    TMPO = T + 16
    pend = []
    def issue_group(g, base):
        m, s = g[0][0], g[0][1]
        set_srd(m)
        n = len(g)
        tok = None
        for i in range(8):
            for b in (0, 1):
                row = rowoff(s, i) + b
                if m != 'o':
                    A(f's_mov_b32 s{S_T0}, {row*8192}')
                    tok = vm.issue(f'buffer_load_dword v{base+2*i+b}, v{WQ}, s[8:11], s{S_T0} offen')
                elif n == 4:
                    A(f's_mov_b32 s{S_T0}, {row*1280 + 128*(g[0][2]>>2)}')
                    tok = vm.issue(f'buffer_load_dwordx2 v[{base+4*i+2*b}:{base+4*i+2*b+1}], v{WO4}, s[8:11], s{S_T0} offen')
                else:
                    A(f's_mov_b32 s{S_T0}, {row*1280}')
                    tok = vm.issue(f'buffer_load_dword v{base+2*i+b}, v{WO2}, s[8:11], s{S_T0} offen')
        return tok
    def finish_group(g, base, tok):
        vm.wait(tok)
        n = len(g)
        for fi, f in enumerate(g):
            sel = 48 + (fi & 1)
            direct = f in reg_of and reg_of[f] < 256
            dst = reg_of[f] if direct else TMPO + 8 * (fi & 1)
            if not direct:
                lg.waitall()
            for i in range(8):
                if n == 4:
                    r0 = base + 4 * i + (fi >> 1); r1 = r0 + 2
                else:
                    r0 = base + 2 * i; r1 = r0 + 1
                A(f'v_perm_b32 v{dst+i}, v{r1}, v{r0}, s{sel}')
            if direct:
                continue
            if f in reg_of:
                for i in range(8):
                    A(f'v_accvgpr_write_b32 a{reg_of[f]-256+i}, v{dst+i}')
            elif f in lds_list:
                o = lds_list.index(f) * 2048
                lg.issue(f'ds_write_b128 v{V_WLDS}, v[{dst}:{dst+3}] offset:{o}')
                lg.issue(f'ds_write_b128 v{V_WLDS}, v[{dst+4}:{dst+7}] offset:{o+1024}')
            else:
                o = l2_list.index(f) * 2048
                A(f's_add_u32 s{S_T1}, s{S_STR}, {o}')
                vm.issue(f'buffer_store_dwordx4 v[{dst}:{dst+3}], v{V_L16}, s[4:7], s{S_T1} offen')
                t2 = vm.issue(f'buffer_store_dwordx4 v[{dst+4}:{dst+7}], v{V_L16}, s[4:7], s{S_T1} offen offset:1024')
                A('s_nop 1')
    g01 = [g for g in groups if cls(g) < 2]
    g2 = [g for g in groups if cls(g) == 2]
    NBUF = 3
    q = []
    for gi, g in enumerate(g01):
        base = TMPA + 32 * (gi % (NBUF + 1))
        q.append((g, base, issue_group(g, base)))
        if len(q) > NBUF - 1 + 1:
            finish_group(*q.pop(0))
    while q:
        finish_group(*q.pop(0))
    TB = [T + 16, T + 32]
    lg.waitall()
    q = []
    for gi, g in enumerate(g2):
        assert len(g) == 2 and all(reg_of[f] < 256 for f in g), g
        base = reg_of[g[0]]
        assert reg_of[g[1]] == base + 8
        q.append((g, base, issue_group(g, base)))
        if len(q) > 3:
            finish2(A, vm, *q.pop(0), TB[0])
    while q:
        finish2(A, vm, *q.pop(0), TB[0])
    vm.waitall()
    GB = P + 24
    A(f'''
    s_mov_b32 s8, s58
    s_mov_b32 s9, s59
    s_mov_b32 s10, 10240
    ''')
    for i in range(3):
        vm.issue(f'buffer_load_dwordx4 v[{GB+4*i}:{GB+4*i+3}], v{V_GATH}, s[8:11], s{S_GOFF} offen offset:{128*i}')
    fill_tok = {}
    def fill(f):
        sr = slot_reg[slot_of[f]]
        if f in lds_list:
            o = lds_list.index(f) * 2048
            lg.issue(f'ds_read_b128 {r(sr,4)}, v{V_WLDS} offset:{o}')
            fill_tok[f] = (lg, lg.issue(f'ds_read_b128 {r(sr+4,4)}, v{V_WLDS} offset:{o+1024}'))
        elif OPT.get('nol2'):
            fill_tok[f] = (None, None)
        else:
            o = l2_list.index(f) * 2048
            A(f's_add_u32 s{S_T1}, s{S_STR}, {o}')
            vm.issue(f'buffer_load_dwordx4 {r(sr,4)}, v{V_L16}, s[4:7], s{S_T1} offen sc1')
            fill_tok[f] = (vm, vm.issue(f'buffer_load_dwordx4 {r(sr+4,4)}, v{V_L16}, s[4:7], s{S_T1} offen offset:1024 sc1'))
    for f in lds_qk1:
        fill(f)
    for i in range(0, 16, 2):
        A(f'v_mov_b64 v[{P+i}:{P+i+1}], 0')
    if stamps:
        for k in range(16):
            A(f's_mov_b32 s{S_ST+k}, 0')
    vm.waitall(); lg.waitall()
    A('s_memtime s[76:77]\ns_waitcnt lgkmcnt(0)\ns_mov_b32 s78, s76\ns_mov_b32 s80, s76')
    def kvaddr():
        A(f'v_and_b32 v{P+19}, 16, v{V_L16}\nv_lshlrev_b32 v{P+19}, 2, v{P+19}')
    def kvblock(lab, first):
        A(f's_add_u32 s{S_T0}, s{S_T}, 1\ns_mov_b32 s{S_SPIN}, 0')
        if not first:
            A(f's_branch {lab}c')
        A(f'''
        {lab}l:
        buffer_load_dword v{P+18}, v{P+19}, s[4:7], s{S_KVF} offen sc1
        s_add_u32 s{S_SPIN}, s{S_SPIN}, 1
        s_cmp_gt_u32 s{S_SPIN}, {1<<17}
        s_cbranch_scc1 L_exit
        s_waitcnt vmcnt(0)
        {lab}c:
        v_cmp_gt_u32 vcc, s{S_T0}, v{P+18}
        s_cbranch_vccnz {lab}l
        ''')
    if kvflags:
        kvaddr(); kvblock(pfx + '_kv0', True)
    A(f'{pfx}_step:')
    A(f'v_add_u32 v{GB+12}, s{S_G1K}, v{V_L16}')
    for i in range(3):
        lg.issue(f'ds_write_b128 v{GB+12}, v[{GB+4*i}:{GB+4*i+3}] offset:{LDS_MEM+1024*i}')
    lg.waitall()
    A('s_barrier')
    stamp(0)
    aslots = [AS, AS + 4, P + 16, P + 20]
    atok = {}
    def aread(s, slots, key):
        atok[(key, s)] = lg.issue(f'ds_read_b128 v[{slots[s % len(slots)]}:{slots[s % len(slots)]+3}], v{V_L16} offset:{LDS_MEM+1024*s}')
    for s in range(4):
        aread(s, aslots, 'qk')
    KX, VX = P + 24, P + 32
    kx_tok = None
    A(f'v_mov_b32 v{P+39}, s{S_T}\ns_mov_b64 exec, 1')
    vm.issue(f'buffer_store_dword v{P+39}, v{V_L16}, s[4:7], s{S_FLAG} offen sc1')
    A('s_mov_b64 exec, -1')
    KVF = {'0':'sc1','1':'sc1 nt','2':'nt'}[OPT.get('kvnt','0')]
    vm.issue(f'buffer_load_dwordx4 v[{KX}:{KX+3}], v{V_KXO}, s[4:7], s{S_KX} offen {KVF}')
    kx_tok = vm.issue(f'buffer_load_dwordx4 v[{KX+4}:{KX+7}], v{V_KXO}, s[4:7], s{S_KX} offen offset:128 {KVF}')
    vm.issue(f'buffer_load_dwordx4 v[{VX}:{VX+3}], v{V_VXO}, s[4:7], s{S_VX} offen {KVF}')
    vx_tok = vm.issue(f'buffer_load_dwordx4 v[{VX+4}:{VX+7}], v{V_VXO}, s[4:7], s{S_VX} offen offset:16 {KVF}')
    def smf(acc, areg, f, refill=True):
        if f in reg_of:
            b = reg_of[f]
        else:
            sb, tok = fill_tok.get(f, (None, None))
            if sb is not None:
                sb.wait(tok)
            b = slot_reg[slot_of[f]]
        A(f'v_smfmac_f32_16x16x64_bf16 v[{acc}:{acc+3}], v[{areg}:{areg+3}], {r(b,8)}, v{V_IDX}')
        if f not in reg_of and refill:
            fill(nxt[f])
    for f in lds_qk1:
        fill_tok.pop(f, None)
    QA = {('q', 0): P, ('q', 1): P + 4, ('k', 0): P + 8, ('k', 1): P + 12}
    for s in range(10):
        lg.wait(atok[('qk', s)])
        ar = aslots[s % 4]
        for (m, t) in (('q', 0), ('k', 0), ('q', 1), ('k', 1)):
            smf(QA[(m, t)], ar, (m, s, t))
        if s + 4 < 10:
            aread(s + 4, aslots, 'qk')
        if s == 7:
            pass
    vslots = [AS, AS + 4]
    VA = P + 16
    vstate = {'s': 0, 'rd': 0}
    def v_read():
        if vstate['rd'] < 10:
            aread(vstate['rd'], vslots, 'v'); vstate['rd'] += 1
    def v_step():
        s = vstate['s']
        if s >= 10: return
        lg.wait(atok[('v', s)])
        ar = vslots[s % 2]
        smf(VA, ar, ('v', s, 0)); smf(VA + 4, ar, ('v', s, 1))
        vstate['s'] += 1
        v_read()
    v_read(); v_read()
    for i in range(0, 8, 2):
        A(f'v_mov_b64 v[{VA+i}:{VA+i+1}], 0')
    stamp(1)
    A('s_nop 3')
    A(f'''
    v_add_f32 v{P+0}, v{P+0}, v{P+1}
    v_add_f32 v{P+2}, v{P+2}, v{P+3}
    v_add_f32 v{P+8}, v{P+8}, v{P+9}
    v_add_f32 v{P+10}, v{P+10}, v{P+11}
    v_cvt_pk_bf16_f32 v{P+1}, v{P+0}, v{P+2}
    v_cvt_pk_bf16_f32 v{P+0}, v{P+8}, v{P+10}
    v_add_f32 v{P+4}, v{P+4}, v{P+5}
    v_add_f32 v{P+6}, v{P+6}, v{P+7}
    v_mfma_f32_16x16x16_bf16 v[{P+8}:{P+11}], v[{P+0}:{P+1}], v[{V_SELT}:{V_SELT+1}], 0
    v_add_f32 v{P+12}, v{P+12}, v{P+13}
    v_add_f32 v{P+14}, v{P+14}, v{P+15}
    v_cvt_pk_bf16_f32 v{P+3}, v{P+4}, v{P+6}
    v_cvt_pk_bf16_f32 v{P+2}, v{P+12}, v{P+14}
    s_nop 1
    v_mfma_f32_16x16x16_bf16 v[{P+12}:{P+15}], v[{P+2}:{P+3}], v[{V_SELT}:{V_SELT+1}], 0
    ''')
    v_step()
    A('s_nop 5')
    X = P + 0
    for i in range(4):
        A(f'v_cvt_pk_bf16_f32 v{X+i}, v{P+8+i}, v{P+12+i}')
    vm.wait(kx_tok)
    A('s_nop 1')
    SX0, SX1, SMM = P + 4, P + 8, P + 12
    A(f'''
    v_mfma_f32_16x16x32_bf16 v[{SX0}:{SX0+3}], v[{KX}:{KX+3}], v[{X}:{X+3}], 0
    v_mfma_f32_16x16x32_bf16 v[{SX1}:{SX1+3}], v[{KX+4}:{KX+7}], v[{X}:{X+3}], 0
    v_mfma_f32_16x16x32_bf16 v[{SMM}:{SMM+3}], v[{X}:{X+3}], v[{X}:{X+3}], 0
    ''')
    v_step()
    A(f's_mov_b64 exec, s[{S_MK}:{S_MK+1}]')
    vm.issue(f'buffer_store_dwordx4 v[{X}:{X+3}], v{V_KMO}, s[4:7], s{S_KM} offen sc1')
    A(f's_mov_b64 exec, s[{S_MV}:{S_MV+1}]')
    A('s_nop 2')
    lg.issue(f'ds_write2_b64 v{V_SWR}, v[{SX0}:{SX0+1}], v[{SX0+2}:{SX0+3}] offset0:0 offset1:64')
    lg.issue(f'ds_write2_b64 v{V_SWR}, v[{SX1}:{SX1+1}], v[{SX1+2}:{SX1+3}] offset0:128 offset1:192')
    lg.issue(f'ds_write_b64 v{V_SWR}, v[{SMM}:{SMM+1}] offset:2048')
    A('s_mov_b64 exec, -1')
    lg.waitall()
    A('s_barrier')
    stamp(2)
    RB = [P + 0, P + 4, P + 8, P + 12, KX]
    rt = [lg.issue(f'ds_read_b128 v[{RB[i]}:{RB[i]+3}], v{V_SRD} offset:{512*i}') for i in range(5)]
    v_step()
    SV = []
    for i in range(5):
        lg.wait(rt[i])
        A(f'v_pk_add_f32 v[{RB[i]}:{RB[i]+1}], v[{RB[i]}:{RB[i]+1}], v[{RB[i]+2}:{RB[i]+3}]')
        SV += [RB[i], RB[i] + 1]
    A('s_nop 0')
    for x in SV:
        A(f'v_add_f32_dpp v{x}, v{x}, v{x} quad_perm:[2,3,0,1] row_mask:0xf bank_mask:0xf')
    v_step()
    M0, M1 = P + 2, P + 3
    A(f'''
    v_max3_f32 v{M0}, v{SV[0]}, v{SV[1]}, v{SV[2]}
    v_max3_f32 v{M1}, v{SV[3]}, v{SV[4]}, v{SV[5]}
    v_max3_f32 v{M0}, v{M0}, v{SV[6]}, v{SV[7]}
    v_max3_f32 v{M1}, v{M1}, v{SV[8]}, v{SV[9]}
    v_max_f32 v{M0}, v{M0}, v{M1}
    v_mov_b32 v{M1}, v{M0}
    s_nop 1
    v_permlane16_swap_b32 v{M0}, v{M1}
    v_max_f32 v{M0}, v{M0}, v{M1}
    v_mov_b32 v{M1}, v{M0}
    s_nop 1
    v_permlane32_swap_b32 v{M0}, v{M1}
    v_max_f32 v{M0}, v{M0}, v{M1}
    v_mul_f32 v{M0}, s{S_SC}, v{M0}
    ''')
    v_step()
    for k, x in enumerate(SV):
        A(f'v_fma_f32 v{x}, v{x}, s{S_SC}, -v{M0}')
    for k, x in enumerate(SV):
        A(f'v_exp_f32 v{x}, v{x}')
        if k in (2, 5, 8):
            v_step()
    v_step(); v_step()
    assert vstate['s'] == 10
    PF = KX + 4
    for i in range(4):
        A(f'v_cvt_pk_bf16_f32 v{PF+i}, v{SV[2*i]}, v{SV[2*i+1]}')
    PM = P + 0
    A(f'''
    v_cvt_pk_bf16_f32 v{PM}, v{SV[8]}, v{SV[9]}
    v_mov_b32 v{PM+1}, 0
    v_mov_b32 v{PM+2}, 0
    v_cvt_pk_bf16_f32 v{PM+3}, v{SV[8]}, v{SV[9]}
    ''')
    ON = KX
    for i in range(4):
        A(f'v_mov_b32 v{ON+i}, 0x3f803f80')
    vm.wait(vx_tok)
    O0, O1, Z = P + 4, P + 8, P + 12
    A(f'''
    v_mfma_f32_16x16x32_bf16 v[{O0}:{O0+3}], v[{VX}:{VX+3}], v[{PF}:{PF+3}], 0
    v_add_f32 v{VA+0}, v{VA+0}, v{VA+1}
    v_add_f32 v{VA+2}, v{VA+2}, v{VA+3}
    v_mfma_f32_16x16x32_bf16 v[{Z}:{Z+3}], v[{ON}:{ON+3}], v[{PF}:{PF+3}], 0
    v_add_f32 v{VA+4}, v{VA+4}, v{VA+5}
    v_add_f32 v{VA+6}, v{VA+6}, v{VA+7}
    v_mfma_f32_16x16x32_bf16 v[{O1}:{O1+3}], v[{VX+4}:{VX+7}], v[{PF}:{PF+3}], 0
    v_cvt_pk_bf16_f32 v{VA+0}, v{VA+0}, v{VA+2}
    v_cvt_pk_bf16_f32 v{VA+1}, v{VA+4}, v{VA+6}
    v_mfma_f32_16x16x16_bf16 v[{Z}:{Z+3}], v[{ON}:{ON+1}], v[{PM}:{PM+1}], v[{Z}:{Z+3}]
    s_nop 0
    v_mfma_f32_16x16x16_bf16 v[{O0}:{O0+3}], v[{VA}:{VA+1}], v[{PM}:{PM+1}], v[{O0}:{O0+3}]
    v_mfma_f32_16x16x16_bf16 v[{O1}:{O1+3}], v[{VA}:{VA+1}], v[{PM+2}:{PM+3}], v[{O1}:{O1+3}]
    ''')
    vm.issue(f'buffer_store_dword v{VA}, v{V_VMO}, s[4:7], s{S_VM} offen sc1')
    vm.issue(f'buffer_store_dword v{VA+1}, v{V_VMO}, s[4:7], s{S_VM} offen offset:16 sc1')
    A(f'''
    s_cmp_eq_u32 s{S_T}, {NSTEP-1}
    s_cbranch_scc1 {pfx}_fin
    s_nop 1
    v_rcp_f32 v{Z}, v{Z}
    s_nop 2
    ''')
    for i in range(4):
        A(f'v_mul_f32 v{O0+i}, v{O0+i}, v{Z}')
    for i in range(4):
        A(f'v_mul_f32 v{O1+i}, v{O1+i}, v{Z}')
    for i in range(4):
        A(f'v_cvt_pk_bf16_f32 v{PM+i}, v{O0+i}, v{O1+i}')
    lg.issue(f'ds_write_b128 v{V_OWR}, v[{PM}:{PM+3}] offset:{LDS_MEM}')
    for i in range(16, 40, 2):
        A(f'v_mov_b64 v[{P+i}:{P+i+1}], 0')
    lg.waitall()
    A('s_barrier')
    stamp(3)
    ot = [lg.issue(f'ds_read_b128 v[{AS+4*s}:{AS+4*s+3}], v{V_L16} offset:{LDS_MEM+1024*s}') for s in (0, 1)]
    for i in range(0, 16, 2):
        A(f'v_mov_b64 v[{P+i}:{P+i+1}], 0')
    lg.wait(ot[0])
    for t in range(4, 10):
        smf(P + 4 * t, AS, ('o', 0, t))
    for t in range(4):
        smf(P + 4 * t, AS, ('o', 0, t))
    lg.wait(ot[1])
    for t in range(4):
        smf(P + 4 * t, AS + 4, ('o', 1, t))
    def pack(t, dst):
        b = P + 4 * t
        A(f'''v_add_f32 v{b}, v{b}, v{b+1}
        v_add_f32 v{b+2}, v{b+2}, v{b+3}
        v_cvt_pk_bf16_f32 v{dst}, v{b}, v{b+2}''')
    smf(P + 16, AS + 4, ('o', 1, 4)); smf(P + 20, AS + 4, ('o', 1, 5))
    smf(P + 24, AS + 4, ('o', 1, 6)); smf(P + 28, AS + 4, ('o', 1, 7))
    pack(0, P + 0)
    smf(P + 32, AS + 4, ('o', 1, 8))
    pack(1, P + 1)
    smf(P + 36, AS + 4, ('o', 1, 9))
    pack(2, P + 2); pack(3, P + 3)
    vm.issue(f'buffer_store_dwordx4 v[{P}:{P+3}], v{V_PUBA}, s[4:7], s{S_INB} offen {hop_sc}')
    for t in range(4, 8):
        pack(t, P + 16 + (t - 4))
    A(f's_add_u32 s{S_T0}, s{S_INB}, {8*4096}')
    vm.issue(f'buffer_store_dwordx4 v[{P+16}:{P+19}], v{V_PUBA}, s[4:7], s{S_T0} offen {hop_sc}')
    pack(8, P + 32); pack(9, P + 33)
    vm.issue(f'buffer_store_dwordx2 v[{P+32}:{P+33}], v{V_PUBC}, s[4:7], s{S_INB} offen {hop_sc}')
    st = lg.issue(f'ds_read_b128 v[{AS}:{AS+3}], v{V_L16} offset:{LDS_SELR}')
    if kvflags:
        kvaddr()
        A(f's_xor_b32 s{S_KVF}, s{S_KVF}, s{S_KVM}')
        vm.issue(f'buffer_load_dword v{P+18}, v{P+19}, s[4:7], s{S_KVF} offen sc1')
    stamp(4)
    lg.waitall()
    RBUF = P + 20
    RB2 = [P + 4, P + 8, P + 12, P + 24]
    RD = P + 28
    A(f'''
    s_add_u32 s{S_T2}, s{S_MBASE}, s{S_MCUR}
    s_add_u32 s{S_T3}, s{S_MBASE}, s{S_MRE}
    s_cmp_ge_u32 s{S_UNIT}, 80
    s_cbranch_scc1 {pfx}_g2
    s_mov_b32 s{S_SPIN}, 0
    {pfx}_p1:
    ''')
    for i in range(4):
        A(f'buffer_load_dwordx4 v[{RB2[i]}:{RB2[i]+3}], v{V_L16}, s[4:7], s{S_RED} offen offset:{1024*i} sc1')
    A(f's_add_u32 s{S_SPIN}, s{S_SPIN}, 1')
    for i in range(4):
        A(f's_waitcnt vmcnt({3-i})')
        c = '0' if i == 0 else f'v[{RD}:{RD+3}]'
        A(f'v_mfma_f32_16x16x32_bf16 v[{RD}:{RD+3}], v[{AS}:{AS+3}], v[{RB2[i]}:{RB2[i]+3}], {c}')
    A(f'''
    s_cmp_gt_u32 s{S_SPIN}, {SPIN_CAP}
    s_cbranch_scc1 {pfx}_p1to
    s_nop 6
    v_cmp_u_f32 vcc, v{RD}, v{RD}
    v_add_f32_dpp v{RD}, v{RD}, v{RD} row_ror:8 row_mask:0xf bank_mask:0xf
    v_add_f32_dpp v{RD+1}, v{RD+1}, v{RD+1} row_ror:8 row_mask:0xf bank_mask:0xf
    v_add_f32_dpp v{RD+2}, v{RD+2}, v{RD+2} row_ror:8 row_mask:0xf bank_mask:0xf
    v_add_f32_dpp v{RD+3}, v{RD+3}, v{RD+3} row_ror:8 row_mask:0xf bank_mask:0xf
    s_cbranch_vccnz {pfx}_p1
    {pfx}_p1ok:
    v_cvt_pk_bf16_f32 v{RD}, v{RD}, v{RD+1}
    v_cvt_pk_bf16_f32 v{RD+1}, v{RD+2}, v{RD+3}
    v_mov_b64 v[{P+36}:{P+37}], -1
    v_mov_b64 v[{P+38}:{P+39}], -1
    s_mov_b64 exec, s[{S_MP}:{S_MP+1}]
    buffer_store_dwordx2 v[{RD}:{RD+1}], v{V_PUB2}, s[4:7], s{S_T2} offen {hop_sc}
    buffer_store_dwordx2 v[{P+36}:{P+37}], v{V_PUB2}, s[4:7], s{S_T3} offen {hop_sc}
    s_mov_b64 exec, -1
    ''')
    for i in range(4):
        A(f'buffer_store_dwordx4 v[{P+36}:{P+39}], v{V_L16}, s[4:7], s{S_RED} offen offset:{1024*i} {hop_sc}')
    A(f'{pfx}_g2:')
    stamp(5)
    for i in range(0, 16, 2):
        A(f'v_mov_b64 v[{P+i}:{P+i+1}], 0')
    GT = P + 16
    A(f'''
    s_add_u32 s{S_T2}, s{S_T2}, s{S_GOFF}
    s_mov_b32 s{S_SPIN}, 0
    s_waitcnt vmcnt(4)
    {pfx}_p2:
    ''')
    for i in range(3):
        A(f'buffer_load_dwordx4 v[{GB+4*i}:{GB+4*i+3}], v{V_GATH}, s[4:7], s{S_T2} offen offset:{128*i} sc1')
    A(f'''
    s_add_u32 s{S_SPIN}, s{S_SPIN}, 1
    s_cmp_gt_u32 s{S_SPIN}, {SPIN_CAP}
    s_cbranch_scc1 {pfx}_p2to
    s_waitcnt vmcnt(2)
    v_max3_u32 v{GT}, v{GB}, v{GB+1}, v{GB+2}
    s_waitcnt vmcnt(1)
    v_max3_u32 v{GT}, v{GT}, v{GB+3}, v{GB+4}
    v_max3_u32 v{GT+1}, v{GB+5}, v{GB+6}, v{GB+7}
    s_waitcnt vmcnt(0)
    v_max3_u32 v{GT}, v{GT}, v{GB+8}, v{GB+9}
    v_max3_u32 v{GT+1}, v{GT+1}, v{GB+10}, v{GB+11}
    v_max_u32 v{GT}, v{GT}, v{GT+1}
    v_cmp_eq_u32 vcc, -1, v{GT}
    s_cbranch_vccnz {pfx}_p2
    {pfx}_p2ok:
    ''')
    stamp(6)
    vm.reset(); lg.reset()
    A(f'''
    s_add_u32 s{S_T}, s{S_T}, 1
    s_xor_b32 s{S_INB}, s{S_INB}, 0x80000
    s_xor_b32 s{S_RED}, s{S_RED}, 0x80000
    s_mov_b32 s{S_MRE}, s{S_MCUR}
    s_add_u32 s{S_MCUR}, s{S_MCUR}, 10240
    s_cmp_eq_u32 s{S_MCUR}, {3*10240}
    s_cselect_b32 s{S_MCUR}, 0, s{S_MCUR}
    s_add_u32 s{S_KX}, s{S_KX}, {0 if OPT.get('samekv') else 32*8192}
    s_add_u32 s{S_VX}, s{S_VX}, {0 if OPT.get('samekv') else 32*8192}
    s_add_u32 s{S_KM}, s{S_KM}, {32*2048}
    s_add_u32 s{S_VM}, s{S_VM}, {32*2048}
    ''')
    if kvflags:
        kvblock(pfx + '_kv1', False)
    A(f'''
    s_branch {pfx}_step
    {pfx}_p1to:
    s_mov_b32 s{S_ERR}, 1
    s_nop 7
    s_branch {pfx}_p1ok
    {pfx}_p2to:
    s_mov_b32 s{S_ERR}, 2
    s_waitcnt vmcnt(0)
    s_branch {pfx}_p2ok
    {pfx}_fin:
    s_waitcnt vmcnt(0) lgkmcnt(0)
    s_barrier
    v_mov_b32 v{P+39}, {NSTEP}
    s_mov_b64 exec, 1
    buffer_store_dword v{P+39}, v{V_L16}, s[4:7], s{S_FLAG} offen sc1
    s_mov_b64 exec, -1
    s_waitcnt vmcnt(0)
    ''')

def finish2(A, vm, g, base, tok, tb):
    vm.wait(tok)
    for i in range(8):
        A(f'v_perm_b32 v{tb+i}, v{base+2*i+1}, v{base+2*i}, s48')
        A(f'v_perm_b32 v{tb+8+i}, v{base+2*i+1}, v{base+2*i}, s49')
    for i in range(0, 16, 2):
        A(f'v_mov_b64 v[{base+i}:{base+i+1}], v[{tb+i}:{tb+i+1}]')

def f32bits(x):
    import struct
    return struct.unpack('<I', struct.pack('<f', x))[0]
```

```python
import sys, os
from asm import *
import layout as L
import rrole, groles
NAME = 'interleave_layers__memory_aug_recurrent_mem_tr__mixer_s_mlp__prompt'
STAMP = int(os.environ.get('STAMP', '0'))
A = Asm()
A.launch('init_kernel', 640, 256, 0)
A.begin('init_kernel')
SENT = (1 << 20) + 32768
A(f'''
s_cmp_ge_u32 s2, 640
s_cbranch_scc1 I_done
s_load_dwordx2 s[4:5], s[0:1], 112
s_load_dwordx2 s[8:9], s[0:1], 0
s_mov_b32 s6, {L.WS_BYTES}
s_mov_b32 s7, 0x20000
s_mov_b32 s10, {2048*1280}
s_mov_b32 s11, 0x20000
s_lshl_b32 s3, s2, 8
v_add_u32 v1, s3, v0
; frag index f = c>>6 = 4*wg + wave ; b = wg/10 ; s = 4*(wg%10) + wave
s_mul_i32 s12, s2, 6554
s_lshr_b32 s12, s12, 16              ; b
s_mul_i32 s13, s12, 10
s_sub_u32 s13, s2, s13
s_lshl_b32 s13, s13, 7
s_mul_i32 s12, s12, {32*1280}
s_add_u32 s12, s12, s13
v_and_b32 v2, 31, v0
v_mul_u32_u24 v2, 1280, v2
v_lshrrev_b32 v3, 5, v0
v_lshl_add_u32 v2, v3, 4, v2
v_lshlrev_b32 v4, 4, v1
s_waitcnt lgkmcnt(0)
buffer_load_dwordx4 v[8:11], v2, s[8:11], s12 offen
v_mov_b32 v12, -1
v_mov_b32 v13, -1
v_mov_b32 v14, -1
v_mov_b32 v15, -1
v_mov_b32 v16, 0
v_mov_b32 v17, 0
v_mov_b32 v18, 0
v_mov_b32 v19, 0
s_cmp_ge_u32 s2, {SENT//4096}
s_cbranch_scc1 I_nosent
s_mov_b32 s14, {L.R_INBOX(0)}
buffer_store_dwordx4 v[12:15], v4, s[4:7], s14 offen
s_mov_b32 s14, {L.R_INBOX(1)}
buffer_store_dwordx4 v[12:15], v4, s[4:7], s14 offen
I_nosent:
s_cmp_ge_u32 s2, 10
s_cbranch_scc1 I_nozero
s_mov_b32 s14, {L.H(0)}
buffer_store_dwordx4 v[16:19], v4, s[4:7], s14 offen
s_mov_b32 s14, {L.H(0)+65*L.BLK}
buffer_store_dwordx4 v[16:19], v4, s[4:7], s14 offen
s_mov_b32 s14, {L.H(1)}
buffer_store_dwordx4 v[16:19], v4, s[4:7], s14 offen
s_mov_b32 s14, {L.H(1)+65*L.BLK}
buffer_store_dwordx4 v[16:19], v4, s[4:7], s14 offen
s_mov_b32 s14, {L.FLAGS}
buffer_store_dwordx4 v[16:19], v4, s[4:7], s14 offen
I_nozero:
s_mov_b32 s14, {L.X(0)}
s_waitcnt vmcnt(0)
buffer_store_dwordx4 v[8:11], v4, s[4:7], s14 offen
s_waitcnt vmcnt(0)
I_done:
s_endpgm
''')
A.end('init_kernel', 24, 24)
ROLE = dict(NONE=0, R=1, QK=2, V=3, AT=4, O=5, RL=6, M1=7, M2=8, M3=9, M4=10)
LAB = {1: 'RR', 2: 'RQK', 3: 'RV', 4: 'RAT', 5: 'RO', 6: 'RRL', 7: 'RM1', 8: 'RM2', 9: 'RM3', 10: 'RM4'}
def ent(role, idx=0, layer=0, grp=0): return ROLE[role] | idx << 8 | layer << 16 | grp << 20
def qkv(i, grp): return ent('QK' if i < 32 else 'V', i, 0, grp)
tab = [[0, 0] for _ in range(256)]
for i in range(32):
    tab[i][0] = ent('R', i, 0); tab[32 + i][0] = ent('R', i, 1)
def o_set(l, k): return [ent('O', 4 * j + k, l) for j in range(5)]
def lst(role, n, l, grp=0, first=0): return [ent(role, first + i, l, grp) for i in range(n)]
ded = [
    o_set(0, 0) + o_set(0, 1) + lst('AT', 4, 0) + [0, 0],
    o_set(0, 2) + o_set(0, 3) + lst('AT', 4, 0, first=4) + [0, 0],
    lst('RL', 5, 0) + lst('M1', 5, 0) + lst('M2', 5, 0) + [0],
    lst('M3', 14, 0) + lst('AT', 2, 1),
    lst('M4', 5, 0, 0) + lst('M4', 5, 0, 1) + lst('AT', 6, 1, first=2),
    o_set(1, 0) + o_set(1, 1) + o_set(1, 2) + [0],
]
sec = [
    o_set(1, 3) + lst('RL', 3, 1),
    lst('M1', 5, 1) + lst('RL', 2, 1, first=3) + [0],
    lst('M2', 5, 1) + lst('M3', 3, 1),
    lst('M3', 8, 1, first=3),
    lst('M4', 5, 1, 0) + lst('M3', 3, 1, first=11),
    lst('M4', 5, 1, 1) + [0, 0, 0],
]
for x in range(6):
    base = 64 + 32 * x
    assert len(ded[x]) == 16 and len(sec[x]) == 8
    for i in range(8):
        q = (x + 6 * i)
        tab[base + i][0] = qkv(q, 0)
        tab[base + 8 + i] = [qkv(q, 1), sec[x][i]]
    for i in range(16):
        tab[base + 16 + i][0] = ded[x][i]
A.launch('main_kernel', 256, 256, 160 * 1024)
A.begin('main_kernel')
A(f'''
s_cmp_ge_u32 s2, 256
s_cbranch_scc1 L_done
s_memrealtime s[82:83]
s_load_dwordx2 s[4:5], s[0:1], 112
s_load_dwordx2 s[90:91], s[0:1], 104
s_getreg_b32 s15, hwreg(HW_REG_XCC_ID)
s_and_b32 s15, s15, 7
v_lshrrev_b32 v1, 6, v0
s_nop 0
v_readfirstlane_b32 s12, v1
s_waitcnt lgkmcnt(0)
s_mov_b32 s6, {L.WS_BYTES}
s_mov_b32 s7, 0x20000
v_mov_b32 v3, 1
s_lshl_b32 s16, s15, 2
v_mov_b32 v4, s16
v_cmp_eq_u32 vcc, 0, v0
s_and_saveexec_b64 s[18:19], vcc
s_cbranch_execz L_norank
global_atomic_add v5, v4, v3, s[90:91] sc0 sc1
s_waitcnt vmcnt(0)
v_mov_b32 v6, 0
ds_write_b32 v6, v5
s_waitcnt lgkmcnt(0)
L_norank:
s_mov_b64 exec, s[18:19]
s_barrier
v_mov_b32 v6, 0
ds_read_b32 v5, v6
s_waitcnt lgkmcnt(0)
v_readfirstlane_b32 s13, v5
s_barrier
s_cmp_ge_u32 s13, 32
s_cbranch_scc1 L_done
s_lshl_b32 s15, s15, 5
s_add_u32 s94, s15, s13            ; slot
s_getpc_b64 s[16:17]
L_pc:
s_add_u32 s16, s16, role_table-L_pc
s_addc_u32 s17, s17, 0
s_lshl_b32 s18, s94, 3
s_load_dwordx2 s[96:97], s[16:17], s18
s_mov_b32 s95, 0
s_waitcnt lgkmcnt(0)
L_disp:
s_bfe_u32 s13, s96, 0x80008
s_bfe_u32 s14, s96, 0x40010
s_bfe_u32 s15, s96, 0x40014
s_and_b32 s16, s96, 0xff
''')
for k, lab in LAB.items():
    A(f's_cmp_eq_u32 s16, {k}\ns_cbranch_scc1 {lab}')
A('s_branch L_fin')
A('''
L_next:
''')
if STAMP:
    A(f'''
    s_memrealtime s[84:85]
    s_waitcnt lgkmcnt(0)
    v_mov_b32 v10, s82
    v_mov_b32 v11, s84
    v_mov_b32 v12, s96
    v_mov_b32 v13, s80
    s_lshl_b32 s16, s94, 6
    s_lshl_b32 s17, s95, 4
    s_add_u32 s16, s16, s17
    s_add_u32 s16, s16, {L.FLAGS + 0x10000}
    v_mov_b32 v9, 0
    s_mov_b64 exec, 1
    buffer_store_dwordx4 v[10:13], v9, s[4:7], s16 offen
    s_mov_b64 exec, -1
    s_waitcnt vmcnt(0)
    s_add_u32 s95, s95, 1
    ''')
A('''
s_mov_b32 s96, s97
s_mov_b32 s97, 0
s_branch L_disp
L_exit:
v_mov_b32 v1, s96
v_mov_b32 v2, 64
s_mov_b64 exec, 1
global_store_dword v2, v1, s[90:91]
s_waitcnt vmcnt(0)
L_fin:
L_done:
s_endpgm
''')
A('RR:')
rrole.gen_R(A, kvflags=True)
A('s_branch L_next')
groles.gen_all_gemms(A)
groles.gen_rl(A)
groles.gen_at(A)
A('s_endpgm')
A.lines.append('.p2align 6')
A.lines.append('.type role_table,@object')
A.lines.append('role_table:')
for e in tab:
    A.lines.append(f'    .long {e[0]:#x}, {e[1]:#x}')
A.end('main_kernel', 512, accum=256)
hdr = open(f'cdna_kernels/{NAME}.s.ref').read().split('\n')
hdr = [l for l in hdr if l.startswith(';') and '@launch' not in l and 'Override' not in l and 'grid=ceil' not in l]
out = sys.argv[1] if len(sys.argv) > 1 else f'cdna_kernels/{NAME}.s'
open(out, 'w').write(A.text('\n'.join(hdr)))
```

```python
class Asm:
    def __init__(self):
        self.lines = []
        self.kernels = []
        self.launches = []
        self.uid = 0
    def __call__(self, s):
        for ln in s.split('\n'):
            ln = ln.strip()
            if ln:
                self.lines.append(('' if ln.endswith(':') else '    ') + ln)
    def label(self, base='L'):
        self.uid += 1
        return f'{base}_{self.uid}'
    def begin(self, name):
        self.lines += [f'.globl {name}', '.p2align 8', f'.type {name},@function', f'{name}:']
    def end(self, name, vgpr, sgpr=102, accum=None):
        if accum is None:
            accum = min(256, (vgpr + 3) // 4 * 4)
        self.kernels.append((name, vgpr, sgpr, accum))
    def launch(self, name, grid, block, lds):
        self.launches.append(f'; @launch kernel={name} grid=({grid},1,1) block=({block},1,1) lds={lds}')
    def text(self, header=''):
        out = []
        if header:
            out += [('; ' + l if not l.startswith(';') else l) for l in header.strip().split('\n')]
        out += self.launches
        out += ['.amdgcn_target "amdgcn-amd-amdhsa--gfx950"', '.text']
        out += self.lines
        out += ['.section .rodata,"a"']
        for (n, v, s, a) in self.kernels:
            out += ['.p2align 6', f'.amdhsa_kernel {n}', f'  .amdhsa_next_free_vgpr {v}',
                    f'  .amdhsa_next_free_sgpr {s}', f'  .amdhsa_accum_offset {a}',
                    '  .amdhsa_group_segment_fixed_size 0', '  .amdhsa_kernarg_size 120',
                    '  .amdhsa_user_sgpr_count 2', '  .amdhsa_user_sgpr_kernarg_segment_ptr 1',
                    '  .amdhsa_system_sgpr_workgroup_id_x 1',
                    '  .amdhsa_float_denorm_mode_32 3',
                    '.end_amdhsa_kernel']
        return '\n'.join(out) + '\n'

def v(i, n=1):
    return f'v{i}' if n == 1 else f'v[{i}:{i+n-1}]'
def a(i, n=1):
    return f'a{i}' if n == 1 else f'a[{i}:{i+n-1}]'
def s(i, n=1):
    return f's{i}' if n == 1 else f's[{i}:{i+n-1}]'
def r(i, n=1):
    if i < 256:
        assert i + n <= 256
        return v(i, n)
    return a(i - 256, n)

class Sb:
    def __init__(self, A, name, maxv):
        self.A, self.name, self.maxv = A, name, maxv
        self.n = 0
        self.done = 0
    def issue(self, txt):
        self.A(txt)
        self.n += 1
        return self.n
    def wait(self, tok):
        if tok is None or tok <= self.done:
            return
        left = self.n - tok
        if left > self.maxv:
            left = self.maxv
        self.A(f's_waitcnt {self.name}({left})')
        self.done = self.n - left
    def waitall(self):
        self.wait(self.n)
    def waitall_force(self):
        self.A(f's_waitcnt {self.name}(0)')
        self.done = self.n
    def reset(self):
        self.done = self.n

import os
STAMP = int(os.environ.get('STAMP', '0'))
def stamp_init(A):
    if STAMP:
        for k in range(10):
            A(f's_mov_b32 s{64+k}, 0')
        A('s_mov_b32 s78, 0\ns_mov_b32 s79, 0')
        A('s_memtime s[74:75]\ns_waitcnt lgkmcnt(0)\ns_mov_b32 s76, s74')
SMASK = int(os.environ.get('SMASK', '0x3ff'), 0)
def stamp(A, k, lg=None):
    if STAMP and (SMASK >> k & 1):
        if lg is not None:
            lg.waitall()
        A(f'''s_memtime s[74:75]
        s_waitcnt lgkmcnt(0)
        s_sub_u32 s77, s74, s76
        s_add_u32 s{64+k}, s{64+k}, s77
        s_mov_b32 s76, s74''')
```

```python
from asm import *
import layout as L
import math, struct
def f32bits(x): return struct.unpack('<I', struct.pack('<f', x))[0]
def fh(x): return hex(f32bits(x))

S_WAVE, S_IDX, S_LAYER, S_GRP = 12, 13, 14, 15
S_B, S_BSTEP, S_SRC, S_DST, S_DEP, S_FLAG, S_PRE, S_SPIN, S_BUF, S_DEPM, S_PEND, S_DEP2, S_STD, S_NB = range(16, 30)
S_T0, S_T1, S_T2, S_T3 = 30, 31, 32, 33
S_R1, S_R2, S_DST2, S_NEED, S_DS, S_DL = 34, 35, 36, 37, 38, 39
S_C0, S_C1, S_C2, S_C3 = 40, 41, 42, 43
S_END = 46
S_HI = 44
S_PD = 48
SPIN_CAP = 1 << 16
EXIT = 'L_exit'

def lay(A, dst, fn, extra=0):
    A(f's_mul_i32 s{dst}, s{S_LAYER}, {fn(1)-fn(0)}\ns_add_u32 s{dst}, s{dst}, {fn(0)+extra}')

def sload(A, spec, saddr, extra=None):
    n = sum(spec)
    for i in range(n):
        A(f's_load_dword s{S_PD+i}, s[4:5], s{saddr} offset:{128*i} glc')
    if extra is not None:
        A(f's_load_dword s{S_PD+n}, s[4:5], s{extra} glc')
        n += 1
    return n
def smin(A, n):
    k = n
    regs = list(range(S_PD, S_PD + n))
    while len(regs) > 1:
        nx = []
        for i in range(0, len(regs) - 1, 2):
            A(f's_min_u32 s{regs[i]}, s{regs[i]}, s{regs[i+1]}')
            nx.append(regs[i])
        if len(regs) & 1: nx.append(regs[-1])
        regs = nx
def spoll(A, spec, saddr, sneed, extra=None, use=None, sleep=1):
    l0, l1 = A.label('P'), A.label('P')
    A(f's_mov_b32 s{S_SPIN}, 0\n{l0}:')
    n = sload(A, spec, saddr, extra)
    A('s_waitcnt lgkmcnt(0)')
    smin(A, use or n)
    A(f'''
    s_cmp_ge_u32 s{S_PD}, s{sneed}
    s_cbranch_scc1 {l1}
    s_add_u32 s{S_SPIN}, s{S_SPIN}, 1
    s_cmp_gt_u32 s{S_SPIN}, {SPIN_CAP}
    s_cbranch_scc1 {EXIT}
    ''')
    if sleep: A(f's_sleep {sleep}')
    A(f's_branch {l0}\n{l1}:')

def vpoll(A, n, saddr, sneed, vt, extra=None, sleep=int(os.environ.get("PSL","1"))):
    l0, l1 = A.label('P'), A.label('P')
    A(f'''
    v_mbcnt_lo_u32_b32 v{vt}, -1, 0
    v_min_u32 v{vt}, {n-1}, v{vt}
    v_lshlrev_b32 v{vt}, 7, v{vt}
    ''')
    if extra is not None:
        A(f's_sub_u32 s{S_SPIN}, s{extra}, s{saddr}\ns_add_u32 s{S_SPIN}, s{S_SPIN}, 4096\nv_add_u32 v{vt}, 4096, v{vt}\nv_writelane_b32 v{vt}, s{S_SPIN}, 31\ns_sub_u32 s{saddr}, s{saddr}, 4096')
    A(f'''
    s_mov_b32 s{S_SPIN}, 0
    s_mov_b64 exec, 0xffffffff
    {l0}:
    buffer_load_dword v{vt+1}, v{vt}, s[4:7], s{saddr} offen sc1
    s_waitcnt vmcnt(0)
    v_cmp_gt_u32 vcc, s{sneed}, v{vt+1}
    s_cbranch_vccz {l1}
    s_add_u32 s{S_SPIN}, s{S_SPIN}, 1
    s_cmp_gt_u32 s{S_SPIN}, {SPIN_CAP}
    s_cbranch_scc1 {EXIT}
    ''')
    if sleep: A(f's_sleep {sleep}')
    A(f's_branch {l0}\n{l1}:\ns_mov_b64 exec, -1')

S_LASTF, S_FD = 47, 63
def put_flag(A, vtmp, vzero, sval):
    A(f'''
    s_sub_u32 s{S_FD}, s{sval}, s{S_LASTF}
    s_mov_b32 s{S_LASTF}, s{sval}
    s_atomic_add s{S_FD}, s[4:5], s{S_FLAG}
    ''')

def emit_stats(A, a0, t, vl8, ssoff):
    A(f'v_pk_add_f32 v[{t}:{t+1}], v[{a0}:{a0+1}], v[{a0+2}:{a0+3}]')
    A(f'v_pk_mul_f32 v[{t+2}:{t+3}], v[{a0}:{a0+1}], v[{a0}:{a0+1}]')
    A(f'v_pk_fma_f32 v[{t+2}:{t+3}], v[{a0+2}:{a0+3}], v[{a0+2}:{a0+3}], v[{t+2}:{t+3}]')
    for i in range(4, 16, 2):
        A(f'v_pk_add_f32 v[{t}:{t+1}], v[{t}:{t+1}], v[{a0+i}:{a0+i+1}]')
        A(f'v_pk_fma_f32 v[{t+2}:{t+3}], v[{a0+i}:{a0+i+1}], v[{a0+i}:{a0+i+1}], v[{t+2}:{t+3}]')
    A(f'''
    v_add_f32 v{t}, v{t}, v{t+1}
    v_add_f32 v{t+1}, v{t+2}, v{t+3}
    v_mov_b32 v{t+2}, v{t}
    v_mov_b32 v{t+3}, v{t+1}
    s_nop 1
    v_permlane32_swap_b32 v{t}, v{t+2}
    v_permlane32_swap_b32 v{t+1}, v{t+3}
    v_pk_add_f32 v[{t}:{t+1}], v[{t}:{t+1}], v[{t+2}:{t+3}]
    s_mov_b64 exec, 0xffffffff
    buffer_store_dwordx2 v[{t}:{t+1}], v{vl8}, s[4:7], s{ssoff} offen sc1
    s_mov_b64 exec, -1
    ''')

class G: pass

def gen_gemm(A, name, KS, NT, form='T', ln=0, epi='store', wsel=None, dbuf=True, shift=False, setup=None, again=None,
             early=False, chunks=None):
    vm = Sb(A, 'vmcnt', 63); lg = Sb(A, 'lgkmcnt', 15)
    NW = KS * NT * 4
    WB = 512 - NW
    wreg = lambda s_, t: WB + (s_ * NT + t) * 4
    V_L16, V_XB, V_XB2, V_SRC, V_DMA, V_L4, V_OUT, V_OUT2, V_L8, V_SR, V_YB = range(0, 11)
    TMP = 12
    EXT = 20
    XS = 24
    ACC = 48
    ST = ACC + 16 * NT
    assert ST + 16 <= WB, (name, ST, WB)
    BUFB = KS * 1024 + (5120 if ln else 0)
    A(f'{name}:')
    T = TMP
    A(f'''
    v_mbcnt_lo_u32_b32 v{T}, -1, 0
    v_mbcnt_hi_u32_b32 v{T}, -1, v{T}      ; lane
    v_lshlrev_b32 v{V_L16}, 4, v{T}
    v_lshlrev_b32 v{V_L8}, 3, v{T}
    v_lshlrev_b32 v{V_L4}, 2, v{T}
    s_mov_b32 s{S_HI}, 0
    s_mov_b32 s{S_HI+1}, -1
    s_barrier
    ''')
    ldw = wsel(A)
    RB = 64 * NT; RPI = 16 // NT; PPR = 4 * NT
    A(f'''
    v_lshrrev_b32 v{T+1}, {int(math.log2(PPR))}, v{T}
    v_and_b32 v{T+2}, {PPR-1}, v{T}
    s_mov_b32 s{S_T0}, {ldw}
    v_mul_lo_u32 v{T+1}, v{T+1}, s{S_T0}
    v_lshl_add_u32 v{T+1}, v{T+2}, 4, v{T+1}
    s_mul_i32 s{S_T0}, s{S_WAVE}, {RB}
    s_add_u32 s{S_T0}, s{S_T0}, s{S_T2}
    v_add_u32 v{T+1}, s{S_T0}, v{T+1}
    v_lshrrev_b32 v{T+2}, 5, v{T}              ; hf
    v_bfe_u32 v{T+3}, v{T}, 2, 2               ; r
    v_lshl_add_u32 v{T+3}, v{T+2}, 3, v{T+3}
    v_mul_u32_u24 v{T+3}, {RB}, v{T+3}
    v_bfe_u32 v{T+4}, v{T}, 4, 1
    v_lshl_add_u32 v{T+3}, v{T+4}, 5, v{T+3}
    v_and_b32 v{T+4}, 1, v{T}
    v_lshl_add_u32 v{T+3}, v{T+4}, 4, v{T+3}
    v_bfe_u32 v{T+4}, v{T}, 1, 1
    v_lshl_add_u32 v{T+3}, v{T+4}, 3, v{T+3}
    s_mul_i32 s{S_T3}, s{S_WAVE}, 40960
    v_add_u32 v{T+3}, s{S_T3}, v{T+3}
    ''')
    NI = KS * NT
    RING = 40
    dtok = {}; rtok = {}
    def rd(s_):
        vm.wait(dtok[s_ * NT + NT - 1])
        o = ((s_ * NT) % RING) * 1024
        for t in range(NT):
            lg.issue(f'ds_read_b64_tr_b16 {r(wreg(s_,t),2)}, v{T+3} offset:{o+64*t}')
            rtok[s_] = lg.issue(f'ds_read_b64_tr_b16 {r(wreg(s_,t)+2,2)}, v{T+3} offset:{o+64*t+4*RB}')
    nrd = 0
    for i in range(NI):
        if i >= RING:
            sp = (i - RING) // NT
            while nrd <= sp:
                rd(nrd); nrd += 1
            lg.wait(rtok[sp])
        A(f's_add_u32 m0, s{S_T3}, {(i % RING) * 1024}\ns_mov_b32 s{S_T0}, {i * RPI * ldw}')
        dtok[i] = vm.issue(f'buffer_load_dwordx4 v{T+1}, s[8:11], s{S_T0} offen lds')
        while (nrd + 1) * NT <= i - 34:
            rd(nrd); nrd += 1
    while nrd < KS:
        rd(nrd); nrd += 1
    lg.waitall()
    if ln:
        for i in range(4):
            A(f'v_mov_b32 v{XS+i}, 0x3f803f80')
        A('s_nop 1')
        for s_ in range(KS):
            for t in range(NT):
                c = '0' if s_ == 0 else v(ACC + 16 * t, 16)
                A(f'v_mfma_f32_32x32x16_bf16 {v(ACC+16*t,16)}, v[{XS}:{XS+3}], {r(wreg(s_,t),4)}, {c}')
        A('s_nop 15')
        for t in range(NT):
            cs = ACC + 16 * t; e = EXT + 2 * t
            A(f'''
            v_cvt_pk_bf16_f32 v{e}, v{cs}, v{cs}
            v_and_b32 v{T+1}, 0xffff0000, v{e}
            v_sub_f32 v{T+1}, v{cs}, v{T+1}
            v_cvt_pk_bf16_f32 v{e+1}, v{T+1}, 0
            v_cndmask_b32 v{e}, v{e}, 0, s[{S_HI}:{S_HI+1}]
            v_cndmask_b32 v{e+1}, v{e+1}, 0, s[{S_HI}:{S_HI+1}]
            ''')
    KQ = KS // 4
    A(f'''
    v_and_b32 v{T+1}, 31, v{T}                 ; token
    v_lshrrev_b32 v{T+2}, 5, v{T}              ; hf
    ''')
    if shift:
        A(f'''
        s_lshr_b32 s{S_T0}, s{S_WAVE}, 1
        s_add_u32 s{S_T0}, s{S_T0}, 1
        s_sub_u32 s{S_T1}, 0, s{S_T0}
        s_bitcmp1_b32 s{S_WAVE}, 0
        s_cselect_b32 s{S_T0}, s{S_T0}, s{S_T1}
        s_add_u32 s{S_T0}, s{S_T0}, 32
        v_add_u32 v{T+3}, s{S_T0}, v{T+1}
        v_lshrrev_b32 v{T+4}, 5, v{T+3}
        v_mul_u32_u24 v{T+4}, {L.BLK}, v{T+4}
        v_and_b32 v{T+3}, 31, v{T+3}
        v_lshl_add_u32 v{T+3}, v{T+2}, 5, v{T+3}
        v_lshl_add_u32 v{V_DMA}, v{T+3}, 4, v{T+4}
        ''')
    else:
        A(f'v_mov_b32 v{V_DMA}, v{V_L16}')
    A(f'''
    v_mul_u32_u24 v{V_SRC}, 2560, v{T+2}
    v_lshl_add_u32 v{V_SRC}, v{T+1}, 3, v{V_SRC}
    v_add_u32 v{V_SRC}, 40960, v{V_SRC}
    s_mul_i32 s{S_T0}, s{S_WAVE}, {NT*2048}
    v_add_u32 v{V_OUT}, s{S_T0}, v{V_L16}
    v_add_u32 v{V_OUT2}, 1024, v{V_OUT}
    s_mov_b32 s{S_C0}, {fh(-2*0.7978845608028654*math.log2(math.e))}
    s_mov_b32 s{S_C1}, {fh(-2*0.7978845608028654*0.044715*math.log2(math.e))}
    s_mov_b32 s{S_C2}, {fh(1/640.)}
    s_mov_b32 s{S_C3}, {fh(1e-5)}
    ''')
    stamp(A, 9)
    A(f'{name}_job:')
    g = G(); g.T = T; g.V_OUT = V_OUT; g.V_OUT2 = V_OUT2; g.V_L16 = V_L16
    cfg = setup(A, g)
    srcblk, dstblk, dspec = cfg['srcblk'], cfg['dstblk'], cfg['dspec']
    depadd = cfg.get('depadd', 1)
    dextra = S_DEP2 if cfg.get('dextra') else None
    nres = cfg.get('nres', 0)
    resblk = cfg.get('resblk', [])
    A(f'''
    s_mov_b32 s{S_PRE}, 0
    s_mov_b32 s{S_LASTF}, 0
    s_mov_b32 s{S_PEND}, 0
    s_mov_b32 s{S_BUF}, 0
    s_barrier
    ''')
    def depaddr(sb):
        A(f'''
        s_and_b32 s{S_T1}, s{sb}, s{S_DEPM}
        s_lshl_b32 s{S_T1}, s{S_T1}, 15
        s_add_u32 s{S_T1}, s{S_T1}, s{S_DEP}
        s_add_u32 s{S_NEED}, s{sb}, {depadd}
        s_min_u32 s{S_NEED}, s{S_NEED}, 64
        ''')
        if cfg.get('nodep0'):
            A(f's_cmp_eq_u32 s{S_LAYER}, 0\ns_cselect_b32 s{S_NEED}, 0, s{S_NEED}')
    def dma_ops(sb, sbuf):
        ops = []
        def pre():
            A(f'''
            s_mul_i32 s{S_DS}, s{sb}, {srcblk}
            s_add_u32 s{S_DS}, s{S_DS}, s{S_SRC}
            s_mov_b32 s{S_DL}, s{sbuf}
            ''')
        first = [True]
        def P_():
            if first[0]: pre(); first[0] = False
        if ln:
            def st0():
                P_()
                A(f'''s_mul_i32 s{S_T0}, s{S_WAVE}, 1280
                s_add_u32 s{S_T0}, s{S_T0}, 40960
                s_add_u32 m0, s{S_T0}, s{S_DL}
                s_add_u32 s{S_T0}, s{S_T0}, s{S_DS}''')
                vm.issue(f'buffer_load_dwordx4 v{V_L16}, s[4:7], s{S_T0} offen sc1 lds')
                vm.issue(f'buffer_load_dword v{V_L4}, s[4:7], s{S_T0} offen offset:1024 sc1 lds')
            ops.append(st0)
        for k in range(nres):
            def rs(k=k):
                P_()
                sr = (S_R1, S_R2)[k]
                A(f's_mul_i32 s{S_T0}, s{sb}, {resblk[k]}\ns_add_u32 s{S_T0}, s{S_T0}, s{sr}')
                vm.issue(f'buffer_load_dwordx4 v[{ST+8*k}:{ST+8*k+3}], v{V_L16}, s[4:7], s{S_T0} offen sc1')
                vm.issue(f'buffer_load_dwordx4 v[{ST+8*k+4}:{ST+8*k+7}], v{V_L16}, s[4:7], s{S_T0} offen offset:1024 sc1')
            ops.append(rs)
        for i in range(KQ):
            def fr(i=i):
                P_()
                if i == 0:
                    A(f'''s_mul_i32 s{S_T0}, s{S_WAVE}, {KQ*1024}
                    s_add_u32 s{S_DS}, s{S_DS}, s{S_T0}
                    s_add_u32 s{S_DL}, s{S_DL}, s{S_T0}''')
                if i % 4 == 0:
                    if i:
                        A(f's_add_u32 s{S_DS}, s{S_DS}, 4096\ns_add_u32 s{S_DL}, s{S_DL}, 4096')
                    A(f's_mov_b32 m0, s{S_DL}\ns_nop 0')
                vm.issue(f'buffer_load_dwordx4 v{V_DMA}, s[4:7], s{S_DS} offen offset:{(i%4)*1024} sc1 lds')
            ops.append(fr)
        return ops
    ND = KQ + 2 * nres + (2 if ln else 0)
    NS = 2 * NT + (2 if epi == 'gelu_y' else 0) + (1 if cfg.get('stats') else 0)
    chunks = chunks or [KQ]
    assert chunks[-1] == KQ
    A(f'{name}_loop:')
    lpre, lgo = A.label('G'), A.label('G')
    A(f's_cmp_lg_u32 s{S_PRE}, 0\ns_cbranch_scc1 {lpre}')
    depaddr(S_B)
    vpoll(A, sum(dspec), S_T1, S_NEED, T + 4, dextra)
    stamp(A, 0)
    for op in dma_ops(S_B, S_BUF): op()
    if early:
        A(f's_waitcnt vmcnt({KQ-chunks[0]})\ns_branch {lgo}\n{lpre}:\ns_waitcnt vmcnt({NS})\n{lgo}:')
    else:
        A(f'{lpre}:\ns_waitcnt vmcnt({KQ-chunks[0]})')
    A(f'''
    v_add_u32 v{V_XB}, s{S_BUF}, v{V_L16}
    v_add_u32 v{V_XB2}, 0x10000, v{V_XB}
    v_add_u32 v{V_SR}, s{S_BUF}, v{V_SRC}
    ''')
    if early:
        A(f's_cmp_lt_u32 s{S_B}, {L.SPLIT-1}\ns_cselect_b32 s{S_BSTEP}, s{S_BSTEP}, 1')
    A(f'''
    s_add_u32 s{S_NB}, s{S_B}, s{S_BSTEP}
    s_barrier
    ''')
    lg.reset()
    stamp(A, 1)
    order = [KQ * w + i for i in range(KQ) for w in range(4)]
    xt = {}
    cdone = [1]
    def xread(p):
        if p >= KS: return
        if cdone[0] < len(chunks) and p >= 4 * chunks[cdone[0] - 1]:
            n = KQ - chunks[cdone[0]]
            if early:
                lk = A.label('G')
                A(f's_cmp_lg_u32 s{S_PRE}, 0\ns_cbranch_scc1 {lk}\ns_waitcnt vmcnt({n})\n{lk}:')
            else:
                A(f's_waitcnt vmcnt({n})')
            A('s_barrier')
            cdone[0] += 1
        s_ = order[p]
        base, off = (V_XB, s_ * 1024) if s_ < 64 else (V_XB2, (s_ - 64) * 1024)
        sl = XS + 4 * (p % 6)
        xt[p] = lg.issue(f'ds_read_b128 v[{sl}:{sl+3}], v{base} offset:{off}')
    for p in range(5):
        xread(p)
    if early:
        depaddr(S_NB)
        lk = A.label('G')
        A(f'''
        s_cmp_eq_u32 s{S_NEED}, 0
        s_cbranch_scc1 {lk}
        v_min_u32 v{ST+14}, {4*(sum(dspec)-1)}, v{V_L4}
        v_lshlrev_b32 v{ST+14}, 5, v{ST+14}
        buffer_load_dword v{ST+15}, v{ST+14}, s[4:7], s{S_T1} offen sc1
        {lk}:
        ''')
    if nres:
        for j in range(8):
            A(f'v_lshlrev_b32 v{ACC+2*j}, 16, v{ST+j}\nv_and_b32 v{ACC+2*j+1}, 0xffff0000, v{ST+j}')
        if nres == 2:
            for j in range(8):
                A(f'v_lshlrev_b32 v{T+2}, 16, v{ST+8+j}\nv_and_b32 v{T+3}, 0xffff0000, v{ST+8+j}')
                A(f'v_pk_add_f32 v[{ACC+2*j}:{ACC+2*j+1}], v[{ACC+2*j}:{ACC+2*j+1}], v[{T+2}:{T+3}]')
        A('s_nop 1')
    side = []
    MEAN, RSTD, SCL, VAR = T + 0, T + 1, T + 2, T + 3
    SA = T + 4
    AX = ST + 8
    RB_ = ST + 16
    st = {}
    def tx(t, wait=None, p=0):
        def f():
            if wait is not None: lg.wait(st[wait])
            A(t)
        side.append((p, f))
    def rdl(key, t, p=0):
        def f(): st[key] = lg.issue(t)
        side.append((p, f))
    if ln:
        for h in range(3):
            ids = list(range(4 * h, min(4 * h + 4, 10)))
            for i in ids:
                rdl(i, f'ds_read_b64 v[{ST+2*(i%4)}:{ST+2*(i%4)+1}], v{V_SR} offset:{256*i}')
            for i in ids:
                q = ST + 2 * (i % 4)
                if i < 2:
                    tx(f'v_mov_b32 v{SA+2*i}, v{q}', i); tx(f'v_mov_b32 v{SA+2*i+1}, v{q+1}')
                else:
                    d = SA + 2 * (i & 1)
                    tx(f'v_add_f32 v{d}, v{d}, v{q}', i); tx(f'v_add_f32 v{d+1}, v{d+1}, v{q+1}')
        for t_ in f'''v_add_f32 v{SA}, v{SA}, v{SA+2}
        v_add_f32 v{SA+1}, v{SA+1}, v{SA+3}
        v_mov_b32 v{SA+2}, v{SA}
        v_mov_b32 v{SA+3}, v{SA+1}
        s_nop 1
        v_permlane32_swap_b32 v{SA}, v{SA+2}
        v_permlane32_swap_b32 v{SA+1}, v{SA+3}
        v_add_f32 v{SA}, v{SA}, v{SA+2}
        v_add_f32 v{SA+1}, v{SA+1}, v{SA+3}
        v_mul_f32 v{MEAN}, s{S_C2}, v{SA}
        v_mul_f32 v{VAR}, s{S_C2}, v{SA+1}
        v_sub_f32 v{SA}, 0, v{MEAN}
        v_cvt_pk_bf16_f32 v{AX+1}, v{SA}, v{SA}
        v_fma_f32 v{VAR}, -v{MEAN}, v{MEAN}, v{VAR}
        v_and_b32 v{SA+1}, 0xffff0000, v{AX+1}
        v_max_f32 v{VAR}, 0, v{VAR}
        v_sub_f32 v{SA}, v{SA}, v{SA+1}
        v_add_f32 v{SA+2}, s{S_C3}, v{VAR}
        v_cvt_pk_bf16_f32 v{AX}, v{SA+1}, v{SA}
        v_rsq_f32 v{RSTD}, v{SA+2}
        s_nop 0'''.split('\n'):
            tx(t_.strip())
        if ln == 2:
            for t_ in f'''v_mul_f32 v{SA}, v{RSTD}, v{RSTD}
            v_fma_f32 v{SA}, v{SA}, v{VAR}, s{S_C3}
            v_rsq_f32 v{SA}, v{SA}
            s_nop 0
            v_mul_f32 v{SCL}, v{SA}, v{RSTD}'''.split('\n'):
                tx(t_.strip())
        else:
            SCL = RSTD
        if form == 'N':
            assert RB_ + 16 <= WB
            for t_ in f'''v_cvt_pk_bf16_f32 v{SA}, v{RSTD}, v{RSTD}
            v_and_b32 v{SA}, 0xffff0000, v{SA}
            v_sub_f32 v{SA+1}, v{RSTD}, v{SA}
            v_cvt_pk_bf16_f32 v{ST+10}, v{SA}, v{SA+1}
            v_and_b32 v{SA}, 0xffff0000, v{ST+10}
            v_sub_f32 v{SA+1}, v{SA+1}, v{SA}
            v_cvt_pk_bf16_f32 v{ST+11}, v{SA+1}, 0
            v_mov_b32 v{SA}, 0x3f803f80
            v_cndmask_b32 v{ST+12}, v{SA}, 0, s[{S_HI}:{S_HI+1}]
            v_cndmask_b32 v{ST+13}, v{SA}, 0, s[{S_HI}:{S_HI+1}]
            s_nop 1
            v_mfma_f32_32x32x8_bf16 v[{RB_}:{RB_+15}], v[{ST+10}:{ST+11}], v[{ST+12}:{ST+13}], 0'''.split('\n'):
                tx(t_.strip())
        if epi == 'gelu_y':
            plast = (4 * chunks[-2] - 4) if len(chunks) > 1 else 0
            tx(f's_lshl_b32 s{S_T0}, s{S_IDX}, 13\ns_add_u32 s{S_T0}, s{S_T0}, s{S_BUF}\nv_add_u32 v{V_YB}, s{S_T0}, v{V_OUT}')
            rdl('y0', f'ds_read_b128 v[{ST}:{ST+3}], v{V_YB}', plast)
            rdl('y1', f'ds_read_b128 v[{ST+4}:{ST+7}], v{V_YB} offset:1024')
            tx(f'v_mul_f32 v{SA}, v{MEAN}, v{RSTD}')
            for j in range(8):
                tx(f'v_lshlrev_b32 v{SA+1}, 16, v{ST+j}', {0: 'y0', 4: 'y1'}.get(j))
                tx(f'v_and_b32 v{SA+2}, 0xffff0000, v{ST+j}')
                tx(f'v_fma_f32 v{SA+1}, v{SA+1}, v{RSTD}, -v{SA}')
                tx(f'v_fma_f32 v{SA+2}, v{SA+2}, v{RSTD}, -v{SA}')
                tx(f'v_cvt_pk_bf16_f32 v{ST+j}, v{SA+1}, v{SA+2}')
            tx(f's_mul_i32 s{S_T1}, s{S_B}, {L.BLK}\ns_add_u32 s{S_T1}, s{S_T1}, s{S_DST2}')
            tx(f'buffer_store_dwordx4 v[{ST}:{ST+3}], v{V_OUT}, s[4:7], s{S_T1} offen sc1')
            tx(f'buffer_store_dwordx4 v[{ST+4}:{ST+7}], v{V_OUT}, s[4:7], s{S_T1} offen offset:1024 sc1')
    per = 4 if NT == 1 else 2
    ck = cfg.get('ck', 24)
    edma = []
    for p in range(KS):
        if early and p == ck:
            assert cdone[0] == len(chunks)
            lk = A.label('G')
            A(f'''
            s_waitcnt vmcnt(0)
            v_cmp_gt_u32 vcc, s{S_NEED}, v{ST+15}
            s_cmp_eq_u64 vcc, 0
            s_cselect_b32 s{S_PRE}, 1, 0
            s_cmp_lt_u32 s{S_NB}, s{S_END}
            s_cselect_b32 s{S_PRE}, s{S_PRE}, 0
            s_cmp_lg_u32 s{S_PRE}, 0
            s_cselect_b32 s{S_T2}, s{S_NB}, s{S_B}
            s_sub_u32 s{S_T3}, {BUFB}, s{S_BUF}
            s_cmp_eq_u32 s{S_PEND}, 0
            s_cbranch_scc1 {lk}
            ''')
            put_flag(A, SA + 3, V_L16, S_PEND)
            A(f's_mov_b32 s{S_PEND}, 0\n{lk}:')
            edma = dma_ops(S_T2, S_T3)
        lg.wait(xt[p])
        s_ = order[p]
        sl = XS + 4 * (p % 6)
        for t in range(NT):
            c = '0' if (p == 0 and not nres) else v(ACC + 16 * t, 16)
            if form == 'T':
                A(f'v_mfma_f32_32x32x16_bf16 {v(ACC+16*t,16)}, {r(wreg(s_,t),4)}, v[{sl}:{sl+3}], {c}')
            else:
                A(f'v_mfma_f32_32x32x16_bf16 {v(ACC+16*t,16)}, v[{sl}:{sl+3}], {r(wreg(s_,t),4)}, {c}')
            if t == 0:
                xread(p + 5)
            elif edma:
                edma.pop(0)()
            for _ in range(per):
                if side and side[0][0] <= p: side.pop(0)[1]()
        if early and p == ck - 1:
            assert not side, len(side)
    while side:
        side.pop(0)[1]()
    assert not edma
    lg.waitall()
    if ln:
        for t in range(NT):
            a_, b_ = f'v[{EXT+2*t}:{EXT+2*t+1}]', f'v[{AX}:{AX+1}]'
            if form == 'N': a_, b_ = b_, a_
            A(f'v_mfma_f32_32x32x8_bf16 {v(ACC+16*t,16)}, {a_}, {b_}, {v(ACC+16*t,16)}')
    if not dbuf:
        A('s_barrier')
    stamp(A, 2)
    if not early:
        depaddr(S_NB)
        nw = sload(A, dspec, S_T1, dextra)
    A(f's_mul_i32 s{S_T0}, s{S_B}, s{S_DST2}' if cfg.get('dyndst') else f's_mul_i32 s{S_T0}, s{S_B}, {dstblk}')
    A(f's_add_u32 s{S_T2}, s{S_T0}, s{S_STD}\ns_add_u32 s{S_T0}, s{S_T0}, s{S_DST}')
    A('s_nop 10')
    osrd = 's[8:11]' if cfg.get('dyndst') else 's[4:7]'
    for t in range(NT):
        a0 = ACC + 16 * t
        if ln and form == 'T' and not epi.startswith('gelu'):
            for i in range(16):
                A(f'v_mul_f32 v{a0+i}, v{a0+i}, v{SCL}')
        elif ln and form == 'N':
            for i in range(0, 16, 2):
                A(f'v_pk_mul_f32 v[{a0+i}:{a0+i+1}], v[{a0+i}:{a0+i+1}], v[{RB_+i}:{RB_+i+1}]')
        if epi.startswith('gelu'):
            G0 = XS
            A(f'v_mov_b32 v{G0+16}, s{S_C0}')
            for h in range(2):
                xs = [a0 + 8 * h + i for i in range(8)]
                for i, x in enumerate(xs): A(f'v_mul_f32 v{x}, v{x}, v{SCL}')
                for i, x in enumerate(xs): A(f'v_mul_f32 v{G0+i}, v{x}, v{x}')
                for i, x in enumerate(xs): A(f'v_fma_f32 v{G0+i}, v{G0+i}, s{S_C1}, v{G0+16}')
                for i, x in enumerate(xs): A(f'v_mul_f32 v{G0+i}, v{G0+i}, v{x}')
                for i, x in enumerate(xs): A(f'v_exp_f32 v{G0+i}, v{G0+i}')
                for i, x in enumerate(xs): A(f'v_add_f32 v{G0+i}, 1.0, v{G0+i}')
                for i, x in enumerate(xs): A(f'v_rcp_f32 v{G0+i}, v{G0+i}')
                for i, x in enumerate(xs): A(f'v_mul_f32 v{x}, v{x}, v{G0+i}')
                for j in range(4):
                    A(f'v_cvt_pk_bf16_f32 v{G0+8+4*h+j}, v{xs[2*j]}, v{xs[2*j+1]}')
                A(f'buffer_store_dwordx4 v[{G0+8+4*h}:{G0+8+4*h+3}], v{(V_OUT,V_OUT2)[h]}, {osrd}, s{S_T0} offen sc1')
        else:
            P0 = XS + 8 * t
            for j in range(8):
                A(f'v_cvt_pk_bf16_f32 v{P0+j}, v{a0+2*j}, v{a0+2*j+1}')
                if j == 3:
                    A(f'buffer_store_dwordx4 v[{P0}:{P0+3}], v{V_OUT}, {osrd}, s{S_T0} offen offset:{2048*t} sc1')
            A(f'buffer_store_dwordx4 v[{P0+4}:{P0+7}], v{V_OUT2}, {osrd}, s{S_T0} offen offset:{2048*t} sc1')
    if cfg.get('stats'):
        lk = A.label('G')
        if cfg['stats'] == 'l0':
            A(f's_cmp_lg_u32 s{S_LAYER}, 0\ns_cbranch_scc1 {lk}')
        emit_stats(A, ACC, XS + 16, V_L8, S_T2)
        A(f'{lk}:')
    stamp(A, 3)
    A(f's_add_u32 s{S_T2}, s{S_B}, 1')
    if dbuf:
        A(f's_sub_u32 s{S_BUF}, {BUFB}, s{S_BUF}')
    l1, l2 = A.label('G'), A.label('G')
    if early:
        A(f'''
        s_mov_b32 s{S_PEND}, s{S_T2}
        s_cmp_lg_u32 s{S_PRE}, 0
        s_cbranch_scc1 {l2}
        s_mov_b32 s{S_PEND}, 0
        s_waitcnt vmcnt(0)
        ''')
        put_flag(A, T, V_L16, S_T2)
        A(f'{l2}:')
    else:
        A('s_waitcnt lgkmcnt(0)')
        smin(A, nw)
        A(f'''
        s_mov_b32 s{S_PRE}, 0
        s_cmp_lt_u32 s{S_PD}, s{S_NEED}
        s_cbranch_scc1 {l1}
        s_cmp_ge_u32 s{S_NB}, 64
        s_cbranch_scc1 {l1}
        s_mov_b32 s{S_PRE}, 1
        ''')
        for op in dma_ops(S_NB, S_BUF): op()
        A(f's_waitcnt vmcnt({ND})\ns_branch {l2}\n{l1}:\ns_waitcnt vmcnt(0)\n{l2}:')
        put_flag(A, T, V_L16, S_T2)
    stamp(A, 4)
    A(f'''
    s_mov_b32 s{S_B}, s{S_NB}
    s_cmp_lt_u32 s{S_B}, s{S_END}
    s_cbranch_scc1 {name}_loop
    ''')
    if again:
        again(A, f'{name}_job')
    A('s_branch L_next')

def wsel_simple(karg, nbytes, ldw, off_code):
    def f(A):
        A(f'''
        s_load_dwordx2 s[8:9], s[0:1], {karg}
        s_mov_b32 s10, {nbytes}
        s_mov_b32 s11, 0x20000
        ''')
        A(off_code)
        A('s_waitcnt lgkmcnt(0)')
        return ldw
    return f

def common(A, src, dst, dep, flagname, dstextra=0, bstep=1, depmul=20):
    lay(A, S_SRC, src); lay(A, S_DST, dst, dstextra)
    lay(A, S_DEP, lambda l: L.flag(dep, l)); lay(A, S_FLAG, lambda l: L.flag(flagname, l))
    A(f'''
    s_lshl_b32 s{S_T0}, s{S_IDX}, 2
    s_add_u32 s{S_T0}, s{S_T0}, s{S_WAVE}      ; tile
    s_lshl_b32 s{S_T1}, s{S_T0}, 7
    s_add_u32 s{S_FLAG}, s{S_FLAG}, s{S_T1}
    s_add_u32 s{S_DEP2}, s{S_DEP}, s{S_T1}
    s_lshl_b32 s{S_T1}, s{S_T0}, 8
    s_add_u32 s{S_STD}, s{S_DST}, s{S_T1}
    s_add_u32 s{S_STD}, s{S_STD}, 40960
    s_lshl_b32 s{S_T2}, s{S_T0}, 11
    s_mul_i32 s{S_T1}, s{S_WAVE}, {depmul}
    s_and_b32 s{S_T1}, s{S_T1}, -4
    s_lshl_b32 s{S_T1}, s{S_T1}, 5
    s_add_u32 s{S_DEP}, s{S_DEP}, s{S_T1}
    s_mov_b32 s{S_DEPM}, 0
    s_mov_b32 s{S_B}, 0
    s_mov_b32 s{S_BSTEP}, {bstep}
    s_mov_b32 s{S_END}, 64
    s_lshl_b32 s{S_T3}, s{S_IDX}, 13
    ''')

def gen_all_gemms(A):
    def wsel_qk(A):
        A(f'''
        s_load_dwordx2 s[8:9], s[0:1], 16
        s_load_dwordx2 s[48:49], s[0:1], 24
        s_mov_b32 s10, 5242880
        s_mov_b32 s11, 0x20000
        s_and_b32 s{S_T2}, s{S_IDX}, 15
        s_lshl_b32 s{S_T2}, s{S_T2}, 9
        s_waitcnt lgkmcnt(0)
        s_cmp_lt_u32 s{S_IDX}, 16
        s_cselect_b32 s8, s8, s48
        s_cselect_b32 s9, s9, s49
        ''')
        return 8192
    def setup_qkv(A, g):
        lay(A, S_SRC, L.X); lay(A, S_DST, L.Q); lay(A, S_FLAG, lambda l: L.flag('QKV', l))
        A(f'''
        s_lshr_b32 s{S_T0}, s{S_IDX}, 4
        s_lshl_b32 s{S_T1}, s{S_T0}, 24
        s_add_u32 s{S_DST}, s{S_DST}, s{S_T1}
        s_sub_u32 s{S_T1}, s{S_T0}, 1
        s_cmp_eq_u32 s{S_T0}, 0
        s_cselect_b32 s{S_T1}, 2, s{S_T1}
        s_lshl_b32 s{S_T1}, s{S_T1}, 8
        s_add_u32 s{S_FLAG}, s{S_FLAG}, s{S_T1}
        s_and_b32 s{S_T0}, s{S_IDX}, 15
        s_lshl_b32 s{S_T1}, s{S_T0}, 14
        s_add_u32 s{S_DST}, s{S_DST}, s{S_T1}
        s_lshl_b32 s{S_T1}, s{S_T0}, 11
        s_add_u32 s{S_FLAG}, s{S_FLAG}, s{S_T1}
        s_lshr_b32 s{S_T1}, s{S_WAVE}, 1
        s_lshl_b32 s{S_T1}, s{S_T1}, 10
        s_add_u32 s{S_FLAG}, s{S_FLAG}, s{S_T1}
        s_and_b32 s{S_T1}, s{S_WAVE}, 1
        s_lshl_b32 s{S_T1}, s{S_T1}, 7
        s_add_u32 s{S_FLAG}, s{S_FLAG}, s{S_T1}
        s_lshl_b32 s{S_T0}, s{S_GRP}, 15
        s_add_u32 s{S_FLAG}, s{S_FLAG}, s{S_T0}
        s_mul_i32 s{S_DEP}, s{S_WAVE}, 640
        s_add_u32 s{S_DEP}, s{S_DEP}, {L.flag('M4', 0)}
        s_mov_b32 s{S_DEPM}, 1
        s_mov_b32 s{S_B}, s{S_GRP}
        s_sub_u32 s{S_BSTEP}, 2, s{S_LAYER}
        s_mov_b32 s{S_STD}, 0
        s_or_b32 s{S_T0}, s{S_GRP}, s{S_LAYER}
        s_cselect_b32 s{S_END}, 64, {L.SPLIT}
        ''')
        return dict(srcblk=L.SBLK, dstblk=262144, dspec=[4, 1], nodep0=True, ck=26)
    def again_qkv(A, lab):
        l = A.label('G')
        A(f'''
        s_or_b32 s{S_T0}, s{S_GRP}, s{S_LAYER}
        s_cbranch_scc1 {l}
        s_mov_b32 s{S_LAYER}, 1
        s_branch {lab}
        {l}:
        ''')
    C40 = [4, 7, 10]
    gen_gemm(A, 'RQK', 40, 2, 'T', 1, 'store', wsel_qk, setup=setup_qkv, again=again_qkv, early=True, chunks=[4, 10])
    gen_gemm(A, 'RV', 40, 2, 'N', 1, 'store',
             wsel_simple(32, 5242880, 8192, f's_and_b32 s{S_T2}, s{S_IDX}, 15\ns_lshl_b32 s{S_T2}, s{S_T2}, 9'),
             setup=setup_qkv, again=again_qkv, early=True, chunks=[4, 10])
    def setup_o(A, g):
        common(A, L.O, L.OP, 'AT', 'O', depmul=8)
        lay(A, S_FLAG, lambda l: L.flag('O', l))
        A(f'''
        s_and_b32 s{S_T0}, s{S_IDX}, 3
        s_lshl_b32 s{S_T1}, s{S_T0}, 16
        s_add_u32 s{S_SRC}, s{S_SRC}, s{S_T1}
        s_mul_i32 s{S_T1}, s{S_T0}, {L.OPK}
        s_add_u32 s{S_DST}, s{S_DST}, s{S_T1}
        s_lshl_b32 s{S_T1}, s{S_T0}, 10
        s_add_u32 s{S_DEP}, s{S_DEP}, s{S_T1}
        s_lshl_b32 s{S_T1}, s{S_T0}, 7
        s_add_u32 s{S_FLAG}, s{S_FLAG}, s{S_T1}
        s_lshr_b32 s{S_T0}, s{S_IDX}, 2
        s_lshl_b32 s{S_T1}, s{S_T0}, 13
        s_add_u32 s{S_DST}, s{S_DST}, s{S_T1}
        s_lshl_b32 s{S_T1}, s{S_T0}, 11
        s_add_u32 s{S_FLAG}, s{S_FLAG}, s{S_T1}
        s_lshl_b32 s{S_T1}, s{S_WAVE}, 9
        s_add_u32 s{S_FLAG}, s{S_FLAG}, s{S_T1}
        ''')
        return dict(srcblk=262144, dstblk=L.BLK, dspec=[2])
    gen_gemm(A, 'RO', 64, 1, 'T', 0, 'store',
             wsel_simple(40, 5242880, 1280, f'''s_and_b32 s{S_T2}, s{S_IDX}, 3
             s_mul_i32 s{S_T2}, s{S_T2}, {1024*1280}
             s_lshr_b32 s{S_T0}, s{S_IDX}, 2
             s_lshl_b32 s{S_T0}, s{S_T0}, 8
             s_add_u32 s{S_T2}, s{S_T2}, s{S_T0}'''), setup=setup_o, chunks=[4, 8, 12, 16])
    offj = f's_lshl_b32 s{S_T2}, s{S_IDX}, 8'
    def setup_m1(A, g):
        common(A, L.X1, L.H, 'RL', 'M1', dstextra=L.BLK)
        lay(A, S_DST2, L.Y)
        A(f's_add_u32 s{S_DST}, s{S_DST}, s{S_T3}\ns_add_u32 s{S_DST2}, s{S_DST2}, s{S_T3}')
        return dict(srcblk=L.SBLK, dstblk=L.BLK, dspec=[4, 1])
    gen_gemm(A, 'RM1', 40, 1, 'T', 2, 'gelu_y', wsel_simple(64, 819200, 1280, offj), setup=setup_m1, chunks=C40)
    def setup_m2(A, g):
        common(A, L.H, L.X1P, 'M1', 'M2')
        lay(A, S_R1, L.Y)
        A(f's_add_u32 s{S_DST}, s{S_DST}, s{S_T3}\ns_add_u32 s{S_R1}, s{S_R1}, s{S_T2}')
        return dict(srcblk=L.BLK, dstblk=L.SBLK, dspec=[4, 1], dextra=True, depadd=2, nres=1, resblk=[L.BLK], stats=True)
    gen_gemm(A, 'RM2', 40, 1, 'T', 0, 'store', wsel_simple(72, 819200, 1280, offj), shift=True, setup=setup_m2, chunks=C40)
    def setup_m3(A, g):
        common(A, L.X1P, L.H2, 'M2', 'M3')
        A(f's_add_u32 s{S_DST}, s{S_DST}, s{S_T3}')
        return dict(srcblk=L.SBLK, dstblk=L.H2BLK, dspec=[4, 1])
    gen_gemm(A, 'RM3', 40, 1, 'T', 1, 'gelu', wsel_simple(80, 640 * 3456, 3456, offj), setup=setup_m3, chunks=C40)
    def setup_m4(A, g):
        common(A, L.H2, lambda l: L.X(1), 'M3', 'M4', bstep=2, depmul=54)
        lay(A, S_R1, L.X1P); lay(A, S_R2, L.X1)
        l0, l1 = A.label('G'), A.label('G')
        T = g.T
        A(f'''
        s_add_u32 s{S_R1}, s{S_R1}, s{S_T2}
        s_add_u32 s{S_R2}, s{S_R2}, s{S_T2}
        s_mov_b32 s{S_B}, s{S_GRP}
        s_lshl_b32 s{S_T0}, s{S_GRP}, 15
        s_add_u32 s{S_FLAG}, s{S_FLAG}, s{S_T0}
        s_cmp_eq_u32 s{S_LAYER}, 0
        s_cbranch_scc0 {l0}
        s_mov_b32 s{S_DST2}, {L.SBLK}
        s_add_u32 s{S_DST}, s{S_DST}, s{S_T3}
        s_mov_b32 s8, s4
        s_mov_b32 s9, s5
        s_mov_b32 s10, {L.WS_BYTES}
        s_branch {l1}
        {l0}:
        s_load_dwordx2 s[8:9], s[0:1], 96
        s_mov_b32 s10, {2048*1280}
        s_mov_b32 s{S_DST2}, {L.BLK}
        s_lshl_b32 s{S_DST}, s{S_IDX}, 8
        v_mul_u32_u24 v{g.V_OUT}, 1280, v{T+1}
        v_lshl_add_u32 v{g.V_OUT}, v{T+2}, 4, v{g.V_OUT}
        s_lshl_b32 s{S_T0}, s{S_WAVE}, 6
        v_add_u32 v{g.V_OUT}, s{S_T0}, v{g.V_OUT}
        v_add_u32 v{g.V_OUT2}, 32, v{g.V_OUT}
        s_waitcnt lgkmcnt(0)
        {l1}:
        ''')
        return dict(srcblk=L.H2BLK, dstblk=L.BLK, dspec=[14], nres=2, resblk=[L.SBLK, L.SBLK], dyndst=True, stats='l0')
    gen_gemm(A, 'RM4', 108, 1, 'T', 0, 'store', wsel_simple(88, 1728 * 1280, 1280, offj), dbuf=False, setup=setup_m4,
             chunks=[4, 8, 12, 17, 22, 27])

def gen_rl(A):
    V_L16, V_L8, V_FL, T = 0, 1, 2, 4
    B0 = 16
    AC = 64
    A(f'''
    RRL:
    v_mbcnt_lo_u32_b32 v{T}, -1, 0
    v_mbcnt_hi_u32_b32 v{T}, -1, v{T}
    v_lshlrev_b32 v{V_L16}, 4, v{T}
    v_lshlrev_b32 v{V_L8}, 3, v{T}
    v_mov_b32 v{V_FL}, 0
    ''')
    lay(A, S_SRC, L.OP); lay(A, S_R1, L.X); lay(A, S_DST, L.X1)
    lay(A, S_DEP, lambda l: L.flag('O', l)); lay(A, S_FLAG, lambda l: L.flag('RL', l))
    A(f'''
    s_lshl_b32 s{S_T0}, s{S_IDX}, 2
    s_add_u32 s{S_T0}, s{S_T0}, s{S_WAVE}        ; tile
    s_lshl_b32 s{S_T1}, s{S_T0}, 9
    s_add_u32 s{S_DEP}, s{S_DEP}, s{S_T1}
    s_lshl_b32 s{S_T1}, s{S_T0}, 7
    s_add_u32 s{S_FLAG}, s{S_FLAG}, s{S_T1}
    s_lshl_b32 s{S_T1}, s{S_T0}, 8
    s_add_u32 s{S_T1}, s{S_T1}, 40960
    v_add_u32 v{V_L8}, s{S_T1}, v{V_L8}
    s_lshl_b32 s{S_T1}, s{S_T0}, 11
    v_add_u32 v{V_L16}, s{S_T1}, v{V_L16}
    s_mov_b32 s{S_B}, 0
    s_mov_b32 s{S_LASTF}, 0
    RRL_loop:
    s_add_u32 s{S_NEED}, s{S_B}, 1
    ''')
    vpoll(A, 4, S_DEP, S_NEED, T + 4)
    stamp(A, 0)
    A(f's_mov_b32 s{S_T0}, s{S_SRC}')
    for k in range(5):
        so = S_T0 if k < 4 else S_R1
        A(f'buffer_load_dwordx4 v[{B0+8*k}:{B0+8*k+3}], v{V_L16}, s[4:7], s{so} offen sc1')
        A(f'buffer_load_dwordx4 v[{B0+8*k+4}:{B0+8*k+7}], v{V_L16}, s[4:7], s{so} offen offset:1024 sc1')
        if k < 3:
            A(f's_add_u32 s{S_T0}, s{S_T0}, {L.OPK}')
    for k in range(5):
        A(f's_waitcnt vmcnt({8-2*k})')
        for j in range(8):
            x = B0 + 8 * k + j
            if k == 0:
                A(f'v_lshlrev_b32 v{AC+2*j}, 16, v{x}\nv_and_b32 v{AC+2*j+1}, 0xffff0000, v{x}')
            else:
                t = T + 2 * (j & 1)
                A(f'v_lshlrev_b32 v{t}, 16, v{x}\nv_and_b32 v{t+1}, 0xffff0000, v{x}')
                A(f'v_pk_add_f32 v[{AC+2*j}:{AC+2*j+1}], v[{AC+2*j}:{AC+2*j+1}], v[{t}:{t+1}]')
    for j in range(8):
        A(f'v_cvt_pk_bf16_f32 v{B0+j}, v{AC+2*j}, v{AC+2*j+1}')
    A(f'''
    buffer_store_dwordx4 v[{B0}:{B0+3}], v{V_L16}, s[4:7], s{S_DST} offen sc1
    buffer_store_dwordx4 v[{B0+4}:{B0+7}], v{V_L16}, s[4:7], s{S_DST} offen offset:1024 sc1
    ''')
    emit_stats(A, AC, T, V_L8, S_DST)
    stamp(A, 1)
    A('s_waitcnt vmcnt(0)')
    put_flag(A, T, V_FL, S_NEED)
    stamp(A, 2)
    A(f'''
    s_add_u32 s{S_SRC}, s{S_SRC}, {L.BLK}
    s_add_u32 s{S_R1}, s{S_R1}, {L.SBLK}
    s_add_u32 s{S_DST}, s{S_DST}, {L.SBLK}
    s_add_u32 s{S_B}, s{S_B}, 1
    s_cmp_lt_u32 s{S_B}, 64
    s_cbranch_scc1 RRL_loop
    s_branch L_next
    ''')

def gen_at(A):
    V_L16, T = 0, 4
    BIAS, SX, OA, PK, SM = 16, 32, 64, 128, 160
    QF = [256, 288]; KF, VF, KMF, VMF = 320, 352, 384, 392
    MXC, LX, M0, M1, AL = T, T + 1, T + 2, T + 3, T + 4
    S_H, S_Q, S_KM, S_RF = S_R1, S_SRC, S_R2, S_DST2
    SL = 56
    A(f'''
    RAT:
    v_mbcnt_lo_u32_b32 v{T}, -1, 0
    v_mbcnt_hi_u32_b32 v{T}, -1, v{T}
    v_lshlrev_b32 v{V_L16}, 4, v{T}
    s_lshl_b32 s{S_H}, s{S_IDX}, 2
    s_add_u32 s{S_H}, s{S_H}, s{S_WAVE}
    v_and_b32 v{T+1}, 31, v{T}
    v_lshrrev_b32 v{T+2}, 5, v{T}
    v_lshlrev_b32 v{T+3}, 2, v{T+2}
    v_sub_u32 v{T+3}, v{T+1}, v{T+3}
    v_mov_b32 v{T+4}, {fh(-1e30)}
    ''')
    for rr in range(16):
        key = 8 * (rr >> 2) + (rr & 3)
        A(f'v_cmp_gt_i32 vcc, {key}, v{T+3}\ns_nop 1\nv_cndmask_b32 v{BIAS+rr}, 0, v{T+4}, vcc')
    lay(A, S_Q, L.Q); lay(A, S_KM, L.KM); lay(A, S_DST, L.O)
    lay(A, S_DEP, lambda l: L.flag('QKV', l)); lay(A, S_RF, lambda l: L.flag('R', l)); lay(A, S_FLAG, lambda l: L.flag('AT', l))
    A(f'''
    s_lshl_b32 s{S_T0}, s{S_H}, 13
    s_add_u32 s{S_Q}, s{S_Q}, s{S_T0}
    s_add_u32 s{S_DST}, s{S_DST}, s{S_T0}
    s_lshl_b32 s{S_T0}, s{S_H}, 12
    s_add_u32 s{S_KM}, s{S_KM}, s{S_T0}
    s_lshl_b32 s{S_T0}, s{S_H}, 7
    s_add_u32 s{S_RF}, s{S_RF}, s{S_T0}
    s_add_u32 s{S_FLAG}, s{S_FLAG}, s{S_T0}
    s_lshl_b32 s{S_T0}, s{S_H}, 10
    s_add_u32 s{S_DEP}, s{S_DEP}, s{S_T0}
    s_sub_u32 s{S_DEPM}, 1, s{S_LAYER}
    s_lshl_b32 s{S_DEPM}, s{S_DEPM}, 15
    s_mov_b32 s{S_C0}, {fh(128 ** -0.5 * math.log2(math.e))}
    s_mov_b32 s{S_B}, 0
    s_mov_b32 s{S_NEED}, 1
    s_mov_b32 s{S_LASTF}, 0
    s_mov_b32 s{S_PRE}, 0
    ''')
    vm = Sb(A, 'vmcnt', 63)
    def loadlist(qf, sq):
        for m in range(3):
            A(f's_add_u32 s{SL+2*m}, s{sq}, {16*L.MB*m}\ns_add_u32 s{SL+2*m+1}, s{sq}, {16*L.MB*m+4096}')
        out = []
        for s_ in range(8):
            out.append(f'buffer_load_dwordx4 {r(qf+4*s_,4)}, v{V_L16}, s[4:7], s{SL+s_//4} offen offset:{(s_%4)*1024} sc1')
            out.append(f'buffer_load_dwordx4 {r(KF+4*s_,4)}, v{V_L16}, s[4:7], s{SL+2+s_//4} offen offset:{(s_%4)*1024} sc1')
        for s_ in range(8):
            out.append(f'buffer_load_dwordx4 {r(VF+4*s_,4)}, v{V_L16}, s[4:7], s{SL+4+s_//4} offen offset:{(s_%4)*1024} sc1')
        return out
    def xh(op, a, b):
        A(f'v_mov_b32 v{b}, v{a}\ns_nop 1\nv_permlane32_swap_b32 v{a}, v{b}\n{op} v{a}, v{a}, v{b}')
    def pre(qf, nlate=0):
        for s_ in range(8):
            c = v(BIAS, 16) if s_ == 0 else v(SX, 16)
            A(f'v_mfma_f32_32x32x16_bf16 {v(SX,16)}, {r(KF+4*s_,4)}, {r(qf+4*s_,4)}, {c}')
        A(f'v_mov_b32 v{T+6}, s{S_C0}\nv_mov_b32 v{T+7}, s{S_C0}\ns_nop 9')
        A(f'v_max3_f32 v{M0}, v{SX}, v{SX+1}, v{SX+2}\nv_max3_f32 v{M1}, v{SX+3}, v{SX+4}, v{SX+5}')
        for i in range(6, 16, 4):
            A(f'v_max3_f32 v{M0}, v{M0}, v{SX+i}, v{SX+i+1}')
            if i + 3 < 16:
                A(f'v_max3_f32 v{M1}, v{M1}, v{SX+i+2}, v{SX+i+3}')
        A(f'v_max_f32 v{M0}, v{M0}, v{M1}')
        xh('v_max_f32', M0, M1)
        A(f'v_mul_f32 v{MXC}, s{S_C0}, v{M0}\nv_sub_f32 v{M0}, 0, v{MXC}\nv_sub_f32 v{M1}, 0, v{MXC}')
        for i in range(0, 16, 2):
            A(f'v_pk_fma_f32 v[{SX+i}:{SX+i+1}], v[{SX+i}:{SX+i+1}], v[{T+6}:{T+7}], v[{M0}:{M1}]')
        for i in range(16): A(f'v_exp_f32 v{SX+i}, v{SX+i}')
        A(f'v_pk_add_f32 v[{M0}:{M1}], v[{SX}:{SX+1}], v[{SX+2}:{SX+3}]')
        for i in range(4, 16, 2):
            A(f'v_pk_add_f32 v[{M0}:{M1}], v[{M0}:{M1}], v[{SX+i}:{SX+i+1}]')
        A(f'v_add_f32 v{LX}, v{M0}, v{M1}')
        for j in range(8): A(f'v_cvt_pk_bf16_f32 v{SX+j}, v{SX+2*j}, v{SX+2*j+1}')
        lk = A.label('G')
        lk2 = A.label('G')
        A(f's_cmp_eq_u32 s{S_PRE}, 0\ns_cbranch_scc1 {lk}\ns_waitcnt vmcnt({nlate})')
        put_flag(A, M0, V_L16, S_B)
        A(f'{lk}:\ns_waitcnt vmcnt(0)')
        for e in range(4):
            o = v(OA + 16 * e, 16)
            A(f'v_mfma_f32_32x32x16_bf16 {o}, {r(VF+8*e,4)}, v[{SX}:{SX+3}], 0')
            A(f'v_mfma_f32_32x32x16_bf16 {o}, {r(VF+8*e+4,4)}, v[{SX+4}:{SX+7}], {o}')
    vpoll(A, 6, S_DEP, S_NEED, T + 8)
    for x in loadlist(QF[0], S_Q): A(x)
    A('s_waitcnt vmcnt(0)')
    pre(QF[0])
    A('RAT_loop:')
    for par in range(2):
        qf, qn = QF[par], QF[1 - par]
        stamp(A, 4)
        vpoll(A, 1, S_RF, S_NEED, T + 8)
        stamp(A, 0)
        vm.reset()
        kt = [vm.issue(f'buffer_load_dwordx4 {r(KMF+4*i,4)}, v{V_L16}, s[4:7], s{S_KM} offen offset:{1024*i} sc1') for i in range(4)]
        A(f'''
        s_cmp_lt_u32 s{S_NEED}, {L.SPLIT}
        s_cselect_b32 s{S_DEPM}, s{S_DEPM}, 0
        s_xor_b32 s{S_DEP}, s{S_DEP}, s{S_DEPM}
        ''')
        sload(A, [6], S_DEP)
        A(f's_add_u32 s{S_NB}, s{S_NEED}, 1\ns_add_u32 s{S_DS}, s{S_Q}, 262144\ns_waitcnt lgkmcnt(0)')
        smin(A, 6)
        A(f'''
        s_cmp_ge_u32 s{S_PD}, s{S_NB}
        s_cselect_b32 s{S_PRE}, 1, 0
        s_cselect_b32 s{S_DL}, s{S_DS}, s{S_Q}
        ''')
        ll = loadlist(qn, S_DL)
        lt = []
        def ld(n=1):
            for _ in range(n):
                if ll: lt.append(vm.issue(ll.pop(0)))
        ld(int(os.environ.get('ATL', '4')))
        for u in range(2):
            vm.wait(kt[u])
            for a_ in range(4):
                c = '0' if u == 0 else v(SM + 16 * a_, 16)
                A(f'v_mfma_f32_32x32x16_bf16 {v(SM+16*a_,16)}, {r(KMF+4*u,4)}, {r(qf+4*(a_+4*u),4)}, {c}')
                if a_ & 1: ld()
        stamp(A, 1)
        A('s_nop 7')
        ld()
        A(f'''
        v_pk_add_f32 v[{SM}:{SM+1}], v[{SM}:{SM+1}], v[{SM+20}:{SM+21}]
        v_pk_add_f32 v[{SM+2}:{SM+3}], v[{SM+2}:{SM+3}], v[{SM+22}:{SM+23}]
        v_pk_add_f32 v[{SM}:{SM+1}], v[{SM}:{SM+1}], v[{SM+40}:{SM+41}]
        v_pk_add_f32 v[{SM+2}:{SM+3}], v[{SM+2}:{SM+3}], v[{SM+42}:{SM+43}]
        v_pk_add_f32 v[{SM}:{SM+1}], v[{SM}:{SM+1}], v[{SM+60}:{SM+61}]
        v_pk_add_f32 v[{SM+2}:{SM+3}], v[{SM+2}:{SM+3}], v[{SM+62}:{SM+63}]
        v_max3_f32 v{M0}, v{SM}, v{SM+1}, v{SM+2}
        v_max_f32 v{M0}, v{M0}, v{SM+3}
        ''')
        xh('v_max_f32', M0, M1)
        ld()
        A(f'''
        v_mul_f32 v{M0}, s{S_C0}, v{M0}
        v_max_f32 v{M0}, v{M0}, v{MXC}
        v_sub_f32 v{AL}, v{MXC}, v{M0}
        ''')
        for i in range(4): A(f'v_fma_f32 v{SM+i}, v{SM+i}, s{S_C0}, -v{M0}')
        A(f'v_exp_f32 v{AL}, v{AL}')
        for i in range(4): A(f'v_exp_f32 v{SM+i}, v{SM+i}')
        ld()
        A(f'''
        v_fma_f32 v{LX}, v{LX}, v{AL}, v{SM}
        v_add_f32 v{M1}, v{SM+1}, v{SM+2}
        v_add_f32 v{LX}, v{LX}, v{SM+3}
        v_add_f32 v{LX}, v{LX}, v{M1}
        ''')
        xh('v_add_f32', LX, M1)
        A(f'v_rcp_f32 v{LX}, v{LX}')
        ld()
        for i in range(4): A(f'v_mul_f32 v{SM+i}, v{SM+i}, v{LX}')
        A(f'''
        v_mul_f32 v{AL}, v{AL}, v{LX}
        v_cvt_pk_bf16_f32 v{SM}, v{SM}, v{SM+1}
        v_cvt_pk_bf16_f32 v{SM+1}, v{SM+2}, v{SM+3}
        v_mov_b32 v{AL+1}, v{AL}
        s_add_u32 s{S_T0}, s{S_DST}, 4096
        ''')
        vm.wait(kt[3])
        for e in range(4):
            for i in range(0, 16, 2):
                A(f'v_pk_mul_f32 v[{OA+16*e+i}:{OA+16*e+i+1}], v[{OA+16*e+i}:{OA+16*e+i+1}], v[{AL}:{AL+1}]')
            if e & 1: ld()
        A('s_nop 0')
        for e in range(4):
            o = v(OA + 16 * e, 16)
            A(f'v_mfma_f32_32x32x8_bf16 {o}, {r(VMF+2*e,2)}, v[{SM}:{SM+1}], {o}')
            if e & 1: ld()
        A('s_nop 7')
        for e in range(4):
            for j in range(8): A(f'v_cvt_pk_bf16_f32 v{PK+8*e+j}, v{OA+16*e+2*j}, v{OA+16*e+2*j+1}')
            so = S_DST if e < 2 else S_T0
            vm.issue(f'buffer_store_dwordx4 v[{PK+8*e}:{PK+8*e+3}], v{V_L16}, s[4:7], s{so} offen offset:{(e%2)*2048} sc1')
            vm.issue(f'buffer_store_dwordx4 v[{PK+8*e+4}:{PK+8*e+7}], v{V_L16}, s[4:7], s{so} offen offset:{(e%2)*2048+1024} sc1')
        assert len(lt) >= 16
        nlate = len(ll)
        ld(24)
        stamp(A, 2)
        l1, l2 = A.label('G'), A.label('G')
        A(f'''
        s_mov_b32 s{S_B}, s{S_NEED}
        s_mov_b32 s{S_NEED}, s{S_NB}
        s_mov_b32 s{S_Q}, s{S_DS}
        s_add_u32 s{S_DST}, s{S_DST}, 262144
        s_add_u32 s{S_KM}, s{S_KM}, 131072
        s_cmp_lg_u32 s{S_PRE}, 0
        s_cbranch_scc1 {l1}
        s_waitcnt vmcnt(0)
        ''')
        put_flag(A, M0, V_L16, S_B)
        A(f's_cmp_ge_u32 s{S_B}, 64\ns_cbranch_scc1 L_next')
        vpoll(A, 6, S_DEP, S_NEED, T + 8)
        for x in loadlist(qn, S_Q): A(x)
        A(f's_waitcnt vmcnt(8)\ns_branch {l2}\n{l1}:')
        vm.wait(lt[15])
        A(f'{l2}:')
        stamp(A, 3)
        pre(qn, nlate)
    A('s_branch RAT_loop')
```

```python
import re
RE_REG = re.compile(r'(?<![\w.])(-?)([vas])(?:(\d+)|\[(\d+):(\d+)\])(?![\w])')
TRANS = ('v_exp_', 'v_log_', 'v_rcp_', 'v_rsq_', 'v_sqrt_', 'v_sin_', 'v_cos_')
def regs(tok):
    out = set()
    for m in RE_REG.finditer(tok):
        k = m.group(2)
        lo = int(m.group(3) if m.group(3) is not None else m.group(4))
        hi = int(m.group(3) if m.group(3) is not None else m.group(5))
        out |= {(k, i) for i in range(lo, hi + 1)}
    if re.search(r'\bvcc\b', tok): out.add(('s', 'vcc'))
    if re.search(r'\bm0\b', tok): out.add(('s', 'm0'))
    return out
class I: pass
def parse(line):
    t = line.split(';')[0].strip()
    if not t or t.endswith(':') or t.startswith('.'): return None
    p = t.split(None, 1)
    x = I(); x.op = p[0]; x.txt = t
    ops = [o.strip() for o in p[1].split(',')] if len(p) > 1 else []
    x.ops = ops
    op = x.op
    x.mfma = op.startswith('v_mfma') or op.startswith('v_smfmac')
    x.valu = op.startswith('v_') and not x.mfma
    x.vmem = op.startswith('buffer_') or op.startswith('global_')
    x.ds = op.startswith('ds_')
    x.w = set(); x.r = set()
    x.states = int(ops[0]) + 1 if op == 's_nop' else 1
    if x.mfma:
        x.passes = 8 if '32x32' in op else 4
        x.w = regs(ops[0]); x.a = regs(ops[1]) | regs(ops[2])
        if op.startswith('v_smfmac'):
            x.c = set(x.w); x.a |= regs(ops[3].split()[0])
        else:
            x.c = regs(ops[3])
        x.r = x.a | x.c
    elif x.valu:
        x.w = regs(ops[0])
        for o in ops[1:]: x.r |= regs(o)
        if 'permlane' in op and 'swap' in op:
            x.w |= regs(ops[1]); x.r |= regs(ops[0])
        if op.startswith('v_fmac') or op.startswith('v_dot2c') or op.startswith('v_writelane'): x.r |= regs(ops[0])
        if '_co_' in op: x.w |= regs(ops[1])
    elif x.vmem:
        lds = t.endswith(' lds')
        if 'load' in op and not lds:
            x.w = regs(ops[0])
            for o in ops[1:]: x.r |= regs(o)
        else:
            for o in ops: x.r |= regs(o)
            if lds: x.r.add(('s', 'm0'))
        x.lds = lds
        x.wide = ('store' in op and ('x4' in op or 'x3' in op))
        if x.wide: x.data = regs(ops[0]) if op.startswith('buffer') else regs(ops[1])
    elif x.ds:
        if 'read' in op:
            x.w = regs(ops[0])
            for o in ops[1:]: x.r |= regs(o)
        else:
            for o in ops: x.r |= regs(o)
    else:
        if op.startswith('s_') and ops and not op.startswith(('s_cmp', 's_cbranch', 's_branch', 's_waitcnt', 's_nop', 's_sleep', 's_bitcmp', 's_atomic')):
            x.w = regs(ops[0])
            for o in ops[1:]: x.r |= regs(o)
    return x
def need(p, c):
    n = 0
    vg = lambda s: {r for r in s if r[0] in 'va'}
    sg = lambda s: {r for r in s if r[0] == 's'}
    if p.mfma:
        big = {4: 8, 8: 12}[p.passes]
        if c.mfma:
            if p.w & c.a: n = max(n, big)
            if p.w & c.c and (p.w != c.c or p.passes != c.passes): n = max(n, big - 2)
            if p.w & c.w and not (p.w & c.c): n = max(n, big - 2)
        elif c.valu or c.vmem or c.ds:
            if p.w & (c.r | c.w): n = max(n, big)
            if c.valu and (p.c & c.w): n = max(n, {4: 3, 8: 7}[p.passes])
    elif p.valu:
        if c.mfma and vg(p.w) & c.r: n = max(n, 2)
        if c.valu:
            if ('_dpp' in c.op or 'permlane' in c.op) and vg(p.w) & c.r: n = max(n, 2)
            if c.op.startswith(('v_readlane', 'v_readfirstlane')) and vg(p.w) & c.r: n = max(n, 1)
            if p.op.startswith(TRANS) and not c.op.startswith(TRANS) and p.w & c.r: n = max(n, 1)
            if sg(p.w) & c.r: n = max(n, 2)
            if p.op.startswith('v_dot') and p.op != c.op and p.w & (c.r | c.w): n = max(n, 3)
        if c.vmem and sg(p.w) & c.r: n = max(n, 5)
    elif p.vmem:
        if p.wide and c.valu and p.data & c.w: n = max(n, 2)
    elif ('s', 'm0') in p.w and c.vmem and c.lds:
        n = max(n, 1)
    return n
def run(lines, fix=True, verbose=False):
    out = []; hist = []
    nfix = 0
    for ln in lines:
        x = parse(ln)
        if x is None:
            out.append(ln); continue
        d = 0; short = 0
        for p in reversed(hist):
            k = need(p, x)
            if k > d: short = max(short, k - d)
            d += p.states
            if d >= 12: break
        if short:
            nfix += 1
            if verbose: print('hazard fix', short, 'before:', x.txt)
            y = parse(f's_nop {short-1}')
            out.append(f'    s_nop {short-1}'); hist.append(y)
        out.append(ln); hist.append(x)
        if x.op in ('s_branch', 's_endpgm'): hist = []
        hist = hist[-14:]
    return out, nfix
```

```python
MB = 1 << 20
NB = 64
WS_BYTES = 256 * MB
BLK = 40960
def Q(l):  return (0 + 48 * l) * MB
def KX(l): return (16 + 48 * l) * MB
def VX(l): return (32 + 48 * l) * MB
def O(l):  return (96 + 16 * l) * MB
def KM(l): return (128 + 8 * l) * MB
RS = 144 * MB
def R_INBOX(l): return RS + 8 * MB * l
def R_MEM(l):   return RS + 8 * MB * l + 352 * 1024
def R_STREAM(l): return RS + 8 * MB * l + 2 * MB
FLAGS = 160 * MB
AB = 164 * MB
def X(l):   return AB + 40 * MB * l
def X1(l):  return AB + 40 * MB * l + 3 * MB
def Y(l):   return AB + 40 * MB * l + 6 * MB
def X1P(l): return AB + 40 * MB * l + 9 * MB
def H(l):   return AB + 40 * MB * l + 12 * MB
def H2(l):  return AB + 40 * MB * l + 16 * MB
def OP(l):  return AB + 40 * MB * l + 24 * MB
H2BLK = 112 * 1024
OPK = 64 * BLK
FL = dict(QKV=0, R=2, AT=3, O=4, RL=5, M1=6, M2=7, M3=8, M4=9)
FAREA = 32768
FLAYER = 12 * FAREA
DBG = FLAGS + 2 * MB
def flag(name, l=0, grp=0): return FLAGS + FLAYER * l + FAREA * (FL[name] + grp)
SBLK = 49152
JUNK = 246 * MB
SPLIT = 44
```

```python
from asm import *
import layout as L
import math, os
OPT=dict(x.split('=') for x in os.environ.get('ROPT','').split(',') if x)

V_L16, V_IDX, V_SELT, V_PUBA, V_PUBC, V_PUB2, V_GATH = 0, 1, 2, 4, 5, 6, 7
V_SWR, V_SRD, V_OWR, V_KXO, V_VXO, V_KMO, V_VMO, V_WLDS = 8, 9, 10, 11, 12, 13, 14, 15
P = 16
AS = 56
FR = 64
LDS_MEM = 0
LDS_S = 10240
LDS_SELR = 15360
LDS_W = 16384
S_WAVE, S_P, S_LAYER = 12, 13, 14
S_T, S_INB, S_RED, S_MCUR, S_MRE, S_GOFF, S_KX, S_VX, S_KM, S_PF, S_STR, S_UNIT, S_SPIN, S_ERR = range(16, 30)
S_T0, S_T1, S_T2, S_T3 = 30, 31, 32, 33
S_G1K, S_MBASE, S_FLAG, S_KVF, S_KVM, S_MMD = 34, 35, 36, 37, 38, 39
S_MV, S_MK, S_MP, S_SC, S_ONE = 40, 42, 44, 46, 62
S_FD = 15
S_ST = 60
SPIN_CAP = 1 << 14

def gen_R(A, NSTEP=64, hop_sc='', pfx='R'):
    pr = lambda m, ss: [(m, s_, t) for s_ in ss for t in (0, 1)]
    types = OPT.get('types', 'AAA')
    vorder = [8, 9, 0, 1, 2, 3, 4, 5, 6, 7]
    na = types.count('A')
    vpos = {}
    ia, ib = 3, 10 - (3 - na)
    for i, ty in enumerate(types):
        if ty == 'A': vpos[i] = ia; ia += 1
        else: vpos[i] = ib; ib += 1
    if OPT.get('vpos'):
        vpos = {i: int(c) for i, c in enumerate(OPT['vpos'])}
    first = pr('q', [0, 1, 2])
    vset = pr('v', [vorder[vpos[i]] for i in range(3)])
    l2_o = [('o', 0, t) for t in (0, 1, 2, 3, 8, 9)]
    seqs = [first, pr('q', [3, 4, 5]), pr('q', [6, 7, 8]), vset, l2_o]
    lds_list = seqs[1] + seqs[2]
    l2_list = []
    for i, ty in enumerate(types):
        (l2_list if ty == 'A' else lds_list).extend(first[2 * i:2 * i + 2])
        (lds_list if ty == 'A' else l2_list).extend(vset[2 * i:2 * i + 2])
    l2_list += l2_o
    l2_qk = first
    allf = [(m, s, t) for m in 'qkv' for s in range(10) for t in (0, 1)] + [('o', s, t) for s in (0, 1) for t in range(10)]
    res = [f for f in allf if f not in lds_list and f not in l2_list]
    assert len(res) == 50
    slot_reg = [FR + 8 * (50 + i) for i in range(6)]
    reg_of = {f: FR + 8 * i for i, f in enumerate(res)}
    slot_of = {}
    nxt = {}
    for k, sq in enumerate(seqs):
        for i, f in enumerate(sq):
            slot_of[f] = i
            nxt[f] = seqs[(k + 1) % len(seqs)][i]
    vm = Sb(A, 'vmcnt', 63)
    lg = Sb(A, 'lgkmcnt', 15)
    nst = [0]
    import asm as _asm
    NBS = int(os.environ.get('NBS', '0')) and STAMP
    PAIRS = [50, 52, 54, 80, 84, 86, 88, 92, 98, 100]
    HS = OPT.get('hs')
    def hstamp(k):
        if HS: stamp(k, True)
    def stamp(k, h=False):
        if HS and not h and k in (1, 2, 3, 4, 5, 6):
            return
        if NBS and k < 8:
            A(f's_memtime s[{PAIRS[k]}:{PAIRS[k]+1}]')
            if k == 7:
                A('s_waitcnt lgkmcnt(0)')
                for j in range(8):
                    prev = 76 if j == 0 else PAIRS[j - 1]
                    A(f's_sub_u32 s77, s{PAIRS[j]}, s{prev}\ns_add_u32 s{64+j}, s{64+j}, s77')
                if OPT.get('trace'):
                    lk = A.label('T')
                    A(f's_and_b32 s77, s{S_T}, 7\ns_cmp_lg_u32 s77, 7\ns_cbranch_scc1 {lk}')
                    for j in range(8):
                        A(f'v_mov_b32 v{P+24+j}, s{PAIRS[j]}')
                    A(f'''s_lshl_b32 s77, s{S_LAYER}, 7
                    s_add_u32 s77, s77, s{S_UNIT}
                    s_lshl_b32 s77, s77, 8
                    s_lshr_b32 s74, s{S_T}, 3
                    s_lshl_b32 s74, s74, 5
                    s_add_u32 s77, s77, s74
                    s_add_u32 s77, s77, {L.DBG + 0x80000}
                    s_mov_b64 exec, 1
                    buffer_store_dwordx4 v[{P+24}:{P+27}], v{V_L16}, s[4:7], s77 offen
                    buffer_store_dwordx4 v[{P+28}:{P+31}], v{V_L16}, s[4:7], s77 offen offset:16
                    s_mov_b64 exec, -1
                    s_waitcnt vmcnt(0)
                    {lk}:''')
                A('s_memtime s[74:75]\ns_waitcnt lgkmcnt(0)\ns_mov_b32 s76, s74')
        else:
            _asm.stamp(A, k, lg)

    T = P
    A(f'''
    v_mbcnt_lo_u32_b32 v{T}, -1, 0
    v_mbcnt_hi_u32_b32 v{T}, -1, v{T}
    v_and_b32 v{T+1}, 15, v{T}             ; c / n / i
    v_lshrrev_b32 v{T+2}, 4, v{T}          ; g
    v_lshlrev_b32 v{V_L16}, 4, v{T}
    ; idx
    v_and_b32 v{T+3}, 1, v{T}
    v_mov_b32 v{V_IDX}, 0x44444444
    v_mov_b32 v{T+4}, 0xeeeeeeee
    v_cmp_eq_u32 vcc, 1, v{T+3}
    s_nop 1
    v_cndmask_b32 v{V_IDX}, v{V_IDX}, v{T+4}, vcc
    v_lshlrev_b32 v{T+4}, 2, v{T+2}
    v_sub_u32 v{T+4}, v{T+1}, v{T+4}       ; n-4g
    v_mov_b32 v{T+5}, 0x3f80
    v_mov_b32 v{T+6}, 0x3f800000
    ''')
    for d in range(2):
        A(f'''
        v_mov_b32 v{V_SELT+d}, 0
        v_cmp_eq_u32 vcc, {2*d}, v{T+4}
        s_nop 1
        v_cndmask_b32 v{V_SELT+d}, v{V_SELT+d}, v{T+5}, vcc
        v_cmp_eq_u32 vcc, {2*d+1}, v{T+4}
        s_nop 1
        v_cndmask_b32 v{V_SELT+d}, v{V_SELT+d}, v{T+6}, vcc
        ''')
    for d in range(4):
        A(f'''
        v_mov_b32 v{T+8+d}, 0
        v_cmp_eq_u32 vcc, {d}, v{T+1}
        s_nop 1
        v_cndmask_b32 v{T+8+d}, v{T+8+d}, v{T+5}, vcc
        v_cmp_eq_u32 vcc, {4+d}, v{T+1}
        s_nop 1
        v_cndmask_b32 v{T+8+d}, v{T+8+d}, v{T+6}, vcc
        ''')
    A(f'ds_write_b128 v{V_L16}, v[{T+8}:{T+11}] offset:{LDS_SELR}')
    A(f'''
    ; pubA = (w*20 + (l>>3))*4096 + p*128 + (l&7)*16
    s_mul_i32 s{S_T0}, s{S_WAVE}, {20*4096}
    s_lshl_b32 s{S_T1}, s{S_P}, 7
    s_add_u32 s{S_T0}, s{S_T0}, s{S_T1}
    v_lshrrev_b32 v{T+4}, 3, v{T}
    v_lshlrev_b32 v{T+4}, 12, v{T+4}
    v_and_b32 v{T+5}, 7, v{T}
    v_lshlrev_b32 v{T+6}, 4, v{T+5}
    v_add3_u32 v{V_PUBA}, v{T+4}, v{T+6}, s{S_T0}
    v_lshlrev_b32 v{T+4}, 12, v{T+2}
    v_lshlrev_b32 v{T+6}, 3, v{T+1}
    s_add_u32 s{S_T0}, s{S_T0}, {16*4096}
    v_add3_u32 v{V_PUBC}, v{T+4}, v{T+6}, s{S_T0}
    ; unit
    s_lshl_b32 s{S_UNIT}, s{S_WAVE}, 5
    s_add_u32 s{S_UNIT}, s{S_UNIT}, s{S_P}
    s_mul_i32 s{S_T0}, s{S_UNIT}, 3277
    s_lshr_b32 s{S_T0}, s{S_T0}, 16          ; uw
    s_mul_i32 s{S_T1}, s{S_T0}, 20
    s_sub_u32 s{S_T1}, s{S_UNIT}, s{S_T1}    ; ui
    s_mul_i32 s{S_T0}, s{S_T0}, 160
    s_cmp_lt_u32 s{S_T1}, 16
    s_cbranch_scc0 {pfx}_kc
    s_lshr_b32 s{S_T2}, s{S_T1}, 3
    s_lshl_b32 s{S_T2}, s{S_T2}, 6
    s_add_u32 s{S_T0}, s{S_T0}, s{S_T2}
    s_and_b32 s{S_T2}, s{S_T1}, 1
    s_lshl_b32 s{S_T2}, s{S_T2}, 5
    s_add_u32 s{S_T0}, s{S_T0}, s{S_T2}
    s_and_b32 s{S_T1}, s{S_T1}, 7
    s_lshr_b32 s{S_T1}, s{S_T1}, 1           ; g
    s_branch {pfx}_kd
    {pfx}_kc:
    s_sub_u32 s{S_T1}, s{S_T1}, 16
    s_add_u32 s{S_T0}, s{S_T0}, 128
    {pfx}_kd:
    s_lshl_b32 s{S_T0}, s{S_T0}, 1
    s_mul_i32 s{S_T1}, s{S_T1}, 2560
    s_add_u32 s{S_T0}, s{S_T0}, s{S_T1}
    v_mul_u32_u24 v{T+4}, 1280, v{T+2}
    v_lshlrev_b32 v{T+6}, 3, v{T+5}
    v_add3_u32 v{V_PUB2}, v{T+4}, v{T+6}, s{S_T0}
    v_lshrrev_b32 v{T+4}, 1, v{T+1}
    v_mul_u32_u24 v{T+4}, 1280, v{T+4}
    v_lshlrev_b32 v{T+6}, 5, v{T+2}
    v_lshlrev_b32 v{T+7}, 4, v{T+3}
    v_add3_u32 v{V_GATH}, v{T+4}, v{T+6}, v{T+7}
    ; ci = (l>>2)*2 + (l&1)
    v_lshrrev_b32 v{T+4}, 2, v{T}
    v_lshl_add_u32 v{T+4}, v{T+4}, 1, v{T+3}
    v_lshlrev_b32 v{T+4}, 4, v{T+4}          ; ci*16
    s_lshr_b32 s{S_T0}, s{S_WAVE}, 1
    s_lshl_b32 s{S_T0}, s{S_T0}, 9
    s_and_b32 s{S_T1}, s{S_WAVE}, 1
    s_lshl_b32 s{S_T2}, s{S_T1}, 3
    s_add_u32 s{S_T0}, s{S_T0}, s{S_T2}
    s_lshl_b32 s{S_MMD}, s{S_WAVE}, 2
    s_sub_u32 s{S_MMD}, s{S_MMD}, s{S_T0}
    s_add_u32 s{S_T0}, s{S_T0}, {LDS_S}
    v_add_u32 v{V_SWR}, s{S_T0}, v{T+4}
    v_bfe_u32 v{T+6}, v{T}, 1, 1
    v_xor_b32 v{T+6}, 1, v{T+6}
    v_mul_u32_u24 v{T+6}, 2560, v{T+6}
    v_add_u32 v{V_SRD}, v{T+4}, v{T+6}
    v_add_u32 v{V_SRD}, {LDS_S}, v{V_SRD}
    ; m = 2*(n>>2) + (n&1)
    v_lshrrev_b32 v{T+4}, 2, v{T+1}
    v_lshl_add_u32 v{T+4}, v{T+4}, 1, v{T+3}
    ; owr = (w>>1)*1024 + (16*(2*(w&1) + (g>>1)) + 2m + (g&1))*16
    v_lshrrev_b32 v{T+6}, 1, v{T+2}             ; g>>1
    v_and_b32 v{T+7}, 1, v{T+2}                 ; g&1
    v_lshlrev_b32 v{T+8}, 4, v{T+6}
    v_lshl_add_u32 v{T+8}, v{T+4}, 1, v{T+8}
    v_add_u32 v{T+8}, v{T+8}, v{T+7}
    v_lshlrev_b32 v{T+8}, 4, v{T+8}
    s_lshl_b32 s{S_T0}, s{S_WAVE}, 9            ; (w>>1)*1024 + (w&1)*512
    v_add_u32 v{V_OWR}, s{S_T0}, v{T+8}
    v_lshl_add_u32 v{T+8}, v{T+6}, 3, v{T+4}
    v_lshl_add_u32 v{T+8}, v{T+7}, 5, v{T+8}
    v_lshlrev_b32 v{T+8}, 4, v{T+8}
    s_lshr_b32 s{S_T0}, s{S_WAVE}, 1
    s_lshl_b32 s{S_T0}, s{S_T0}, 10
    s_and_b32 s{S_T1}, s{S_WAVE}, 1
    s_lshl_b32 s{S_T2}, s{S_T1}, 8
    s_add_u32 s{S_T2}, s{S_T2}, s{S_T0}
    v_add_u32 v{V_KMO}, s{S_T2}, v{T+8}
    v_and_b32 v{T+8}, 9, v{T+1}
    v_bfe_u32 v{T+9}, v{T+1}, 1, 1
    v_lshl_add_u32 v{T+8}, v{T+9}, 2, v{T+8}
    v_bfe_u32 v{T+9}, v{T+1}, 2, 1
    v_lshl_add_u32 v{T+8}, v{T+9}, 1, v{T+8}
    v_lshlrev_b32 v{T+8}, 1, v{T+8}
    v_lshl_add_u32 v{T+8}, v{T+6}, 5, v{T+8}
    v_lshlrev_b32 v{T+8}, 4, v{T+8}
    v_lshl_add_u32 v{T+8}, v{T+7}, 2, v{T+8}
    s_lshl_b32 s{S_T2}, s{S_T1}, 3
    s_add_u32 s{S_T2}, s{S_T2}, s{S_T0}
    v_add_u32 v{V_VMO}, s{S_T2}, v{T+8}
    v_add_u32 v{V_VMO}, {LDS_MEM+8192}, v{V_VMO}
    s_mov_b32 s{S_ONE}, 0x3f803f80
    s_mov_b32 s{S_ONE+1}, 0x3f803f80
    v_lshrrev_b32 v{T+8}, 3, v{T+1}             ; gi>>1
    v_lshlrev_b32 v{T+8}, 4, v{T+8}
    v_and_b32 v{T+9}, 7, v{T+1}                 ; 4(gi&1)+b
    v_add_u32 v{T+8}, v{T+8}, v{T+9}
    v_lshl_add_u32 v{T+8}, v{T+7}, 5, v{T+8}    ; + 32hf
    v_lshlrev_b32 v{T+8}, 4, v{T+8}
    v_lshl_add_u32 v{T+8}, v{T+6}, 10, v{T+8}
    s_lshl_b32 s{S_T0}, s{S_WAVE}, 11
    v_add_u32 v{V_KXO}, s{S_T0}, v{T+8}
    v_and_b32 v{T+8}, 9, v{T+1}
    v_bfe_u32 v{T+9}, v{T+1}, 1, 1
    v_lshl_add_u32 v{T+8}, v{T+9}, 2, v{T+8}
    v_bfe_u32 v{T+9}, v{T+1}, 2, 1
    v_lshl_add_u32 v{T+8}, v{T+9}, 1, v{T+8}
    v_lshlrev_b32 v{T+8}, 1, v{T+8}
    v_lshl_add_u32 v{T+8}, v{T+7}, 5, v{T+8}
    v_lshlrev_b32 v{T+8}, 4, v{T+8}
    v_lshl_add_u32 v{T+8}, v{T+6}, 10, v{T+8}
    v_add_u32 v{V_VXO}, s{S_T0}, v{T+8}
    ; wlds
    s_mul_i32 s{S_T0}, s{S_WAVE}, {18*2048}
    s_add_u32 s{S_T0}, s{S_T0}, {LDS_W}
    v_add_u32 v{V_WLDS}, s{S_T0}, v{V_L16}
    s_mul_i32 s{S_T0}, s{S_LAYER}, {L.R_INBOX(1)-L.R_INBOX(0)}
    s_add_u32 s{S_INB}, s{S_T0}, {L.R_INBOX(0)}
    s_lshl_b32 s{S_T1}, s{S_UNIT}, 12
    s_add_u32 s{S_RED}, s{S_INB}, s{S_T1}
    s_add_u32 s{S_MBASE}, s{S_T0}, {L.R_MEM(0)}
    s_mov_b32 s{S_MCUR}, 0
    s_mov_b32 s{S_MRE}, {2*10240}
    s_mul_i32 s{S_T1}, s{S_WAVE}, 3
    s_min_u32 s{S_T1}, s{S_T1}, 6
    s_lshl_b32 s{S_GOFF}, s{S_T1}, 7
    s_lshl_b32 s{S_G1K}, s{S_T1}, 10
    s_mul_i32 s{S_T1}, s{S_P}, {48*2048}
    s_mul_i32 s{S_T2}, s{S_WAVE}, {12*2048}
    s_add_u32 s{S_T1}, s{S_T1}, s{S_T2}
    s_add_u32 s{S_STR}, s{S_T0}, s{S_T1}
    s_add_u32 s{S_STR}, s{S_STR}, {L.R_STREAM(0)}
    s_mul_i32 s{S_T0}, s{S_LAYER}, {L.KX(1)-L.KX(0)}
    s_lshl_b32 s{S_T1}, s{S_P}, 13
    s_add_u32 s{S_T0}, s{S_T0}, s{S_T1}
    s_add_u32 s{S_KX}, s{S_T0}, {L.KX(0)}
    s_add_u32 s{S_VX}, s{S_T0}, {L.VX(0)}
    s_mul_i32 s{S_T0}, s{S_LAYER}, {L.KM(1)-L.KM(0)}
    s_lshl_b32 s{S_T1}, s{S_P}, 12
    s_add_u32 s{S_T0}, s{S_T0}, s{S_T1}
    s_add_u32 s{S_KM}, s{S_T0}, {L.KM(0)}
    s_lshl_b32 s{S_T0}, s{S_WAVE}, 10
    s_add_u32 s{S_KM}, s{S_KM}, s{S_T0}
    s_add_u32 s47, s{S_T0}, {LDS_MEM+2048}
    s_add_u32 s{S_T1}, s{S_T0}, {LDS_MEM+6144}
    s_cmp_lt_u32 s{S_WAVE}, 2
    s_cselect_b32 s47, s47, s{S_T1}
    s_mov_b32 s{S_PF}, s{S_KM}
    s_mul_i32 s{S_T0}, s{S_LAYER}, {L.FLAYER}
    s_lshl_b32 s{S_T1}, s{S_P}, 7
    s_add_u32 s{S_FLAG}, s{S_T0}, s{S_T1}
    s_add_u32 s{S_FLAG}, s{S_FLAG}, {L.flag('R')}
    s_mov_b32 s{S_FD}, 0
    s_lshl_b32 s{S_T1}, s{S_P}, 10
    s_add_u32 s{S_KVF}, s{S_T0}, s{S_T1}
    s_lshr_b32 s{S_T1}, s{S_WAVE}, 1
    s_lshl_b32 s{S_T1}, s{S_T1}, 7
    s_add_u32 s{S_KVF}, s{S_KVF}, s{S_T1}
    s_add_u32 s{S_KVF}, s{S_KVF}, {L.flag('QKV')}
    s_sub_u32 s{S_KVM}, 1, s{S_LAYER}
    s_lshl_b32 s{S_KVM}, s{S_KVM}, 15
    s_mov_b32 s{S_MV}, 0xcccccccc
    s_mov_b32 s{S_MV+1}, 0xcccccccc
    s_mov_b32 s{S_MK}, 0x33333333
    s_mov_b32 s{S_MK+1}, 0x33333333
    s_mov_b32 s{S_MP}, 0x00ff00ff
    s_mov_b32 s{S_MP+1}, 0
    s_mov_b32 s{S_SC}, {hex(f32bits(128 ** -0.5 * math.log2(math.e)))}
    s_mov_b32 s{S_ERR}, 0
    s_mov_b32 s{S_T}, 0
    s_mov_b32 s48, 0x05040100
    s_mov_b32 s49, 0x07060302
    ''')
    WQ = T + 12
    WO4 = T + 13
    WO2 = T + 14
    A(f'''
    v_lshlrev_b32 v{T+8}, 4, v{T+6}
    v_lshl_add_u32 v{T+8}, v{T+7}, 2, v{T+8}
    v_lshlrev_b32 v{T+9}, 13, v{T+8}
    v_lshl_add_u32 v{T+9}, v{T+1}, 2, v{T+9}
    s_lshl_b32 s{S_T0}, s{S_P}, 8
    s_lshl_b32 s{S_T1}, s{S_WAVE}, 6
    s_add_u32 s{S_T0}, s{S_T0}, s{S_T1}
    v_add_u32 v{WQ}, s{S_T0}, v{T+9}
    v_mul_u32_u24 v{T+9}, 1280, v{T+8}
    s_mul_i32 s{S_T0}, s{S_P}, 163840
    s_mul_i32 s{S_T1}, s{S_WAVE}, 320
    s_add_u32 s{S_T0}, s{S_T0}, s{S_T1}
    v_lshl_add_u32 v{T+10}, v{T+1}, 3, v{T+9}
    v_add_u32 v{WO4}, s{S_T0}, v{T+10}
    v_lshl_add_u32 v{T+10}, v{T+1}, 2, v{T+9}
    v_add_u32 v{WO2}, s{S_T0}, v{T+10}
    v_add_u32 v{WO2}, 256, v{WO2}
    s_load_dwordx2 s[50:51], s[0:1], 16
    s_load_dwordx2 s[52:53], s[0:1], 24
    s_load_dwordx2 s[54:55], s[0:1], 32
    s_load_dwordx2 s[56:57], s[0:1], 40
    s_load_dwordx2 s[58:59], s[0:1], 8
    s_waitcnt lgkmcnt(0)
    s_mov_b32 s10, 5242880
    s_mov_b32 s11, 0x20000
    ''')
    lg.reset()
    cur_srd = [None]
    def set_srd(m):
        if cur_srd[0] != m:
            b = {'q': 50, 'k': 52, 'v': 54, 'o': 56}[m]
            A(f's_mov_b32 s8, s{b}\ns_mov_b32 s9, s{b+1}')
            cur_srd[0] = m
    def rowoff(s, i):
        hb, jd = i >> 2, i & 3
        return 64 * s + 32 * hb + 8 * (jd & 1) + 2 * (jd >> 1)
    groups = []
    for m in 'qkv':
        for s in range(10):
            groups.append([(m, s, 0), (m, s, 1)])
    for s in (0, 1):
        groups.append([('o', s, t) for t in range(0, 4)])
        groups.append([('o', s, t) for t in range(4, 8)])
        groups.append([('o', s, t) for t in (8, 9)])
    def cls(g):
        if g[0] not in reg_of: return 0
        return 1 if reg_of[g[0]] >= 256 and reg_of[g[-1]] >= 256 else 2
    groups.sort(key=cls)
    TMPA = FR
    TMPO = T + 16
    pend = []
    def issue_group(g, base):
        m, s = g[0][0], g[0][1]
        set_srd(m)
        n = len(g)
        tok = None
        for i in range(8):
            for b in (0, 1):
                row = rowoff(s, i) + b
                if m != 'o':
                    A(f's_mov_b32 s{S_T0}, {row*8192}')
                    tok = vm.issue(f'buffer_load_dword v{base+2*i+b}, v{WQ}, s[8:11], s{S_T0} offen')
                elif n == 4:
                    A(f's_mov_b32 s{S_T0}, {row*1280 + 128*(g[0][2]>>2)}')
                    tok = vm.issue(f'buffer_load_dwordx2 v[{base+4*i+2*b}:{base+4*i+2*b+1}], v{WO4}, s[8:11], s{S_T0} offen')
                else:
                    A(f's_mov_b32 s{S_T0}, {row*1280}')
                    tok = vm.issue(f'buffer_load_dword v{base+2*i+b}, v{WO2}, s[8:11], s{S_T0} offen')
        return tok
    def finish_group(g, base, tok):
        vm.wait(tok)
        n = len(g)
        for fi, f in enumerate(g):
            sel = 48 + (fi & 1)
            direct = f in reg_of and reg_of[f] < 256
            dst = reg_of[f] if direct else TMPO + 8 * (fi & 1)
            if not direct:
                lg.waitall()
            for i in range(8):
                if n == 4:
                    r0 = base + 4 * i + (fi >> 1); r1 = r0 + 2
                else:
                    r0 = base + 2 * i; r1 = r0 + 1
                A(f'v_perm_b32 v{dst+i}, v{r1}, v{r0}, s{sel}')
            if direct:
                continue
            if f in reg_of:
                for i in range(8):
                    A(f'v_accvgpr_write_b32 a{reg_of[f]-256+i}, v{dst+i}')
            elif f in lds_list:
                o = lds_list.index(f) * 2048
                lg.issue(f'ds_write_b128 v{V_WLDS}, v[{dst}:{dst+3}] offset:{o}')
                lg.issue(f'ds_write_b128 v{V_WLDS}, v[{dst+4}:{dst+7}] offset:{o+1024}')
            else:
                o = l2_list.index(f) * 2048
                A(f's_add_u32 s{S_T1}, s{S_STR}, {o}')
                vm.issue(f'buffer_store_dwordx4 v[{dst}:{dst+3}], v{V_L16}, s[4:7], s{S_T1} offen')
                t2 = vm.issue(f'buffer_store_dwordx4 v[{dst+4}:{dst+7}], v{V_L16}, s[4:7], s{S_T1} offen offset:1024')
                A('s_nop 1')
    g01 = [g for g in groups if cls(g) < 2]
    g2 = [g for g in groups if cls(g) == 2]
    NBUF = 3
    q = []
    for gi, g in enumerate(g01):
        base = TMPA + 32 * (gi % (NBUF + 1))
        q.append((g, base, issue_group(g, base)))
        if len(q) > NBUF - 1 + 1:
            finish_group(*q.pop(0))
    while q:
        finish_group(*q.pop(0))
    TB = [T + 16, T + 32]
    lg.waitall()
    q = []
    for gi, g in enumerate(g2):
        assert len(g) == 2 and all(reg_of[f] < 256 for f in g), g
        base = reg_of[g[0]]
        assert reg_of[g[1]] == base + 8
        q.append((g, base, issue_group(g, base)))
        if len(q) > 3:
            finish2(A, vm, *q.pop(0), TB[0])
    while q:
        finish2(A, vm, *q.pop(0), TB[0])
    vm.waitall()
    GB = P + 24
    S_SB = 56
    S_PD = 48
    A(f"""
    s_mov_b32 s8, s58
    s_mov_b32 s9, s59
    s_mov_b32 s10, 10240
    """)
    for i in range(4):
        vm.issue(f'buffer_load_dwordx4 v[{GB+4*i}:{GB+4*i+3}], v{V_GATH}, s[8:11], s{S_GOFF} offen offset:{128*i}')
    for i in range(6):
        A(f's_add_u32 s{S_SB+i}, s{S_STR}, {4096*i}')
    fill_tok = {}
    inloop = [False]
    KVF = OPT.get('kvf', 'sc1').replace('+', ' ')
    VVF = OPT.get('vvf', 'sc1').replace('+', ' ')
    PFF = OPT.get('pff', 'sc1').replace('+', ' ')
    l2q = []
    def l2_issue(n=1):
        for _ in range(n):
            if not l2q: return
            f, h = l2q.pop(0)
            sr = slot_reg[slot_of[f]] + 4 * h
            o = l2_list.index(f) * 2048 + 1024 * h
            if OPT.get('nol2') == '1' or (OPT.get('nol2') == 'q' and f[0] == 'q') or (OPT.get('nol2') == 'o' and f[0] == 'o'):
                if inloop[0]:
                    A('s_nop 0')
                    if h: fill_tok[f] = None
                    continue
            if OPT.get('samel2'): o = 1024 * h
            tok = vm.issue(f'buffer_load_dwordx4 {r(sr,4)}, v{V_L16}, s[4:7], s{S_SB + o // 4096} offen offset:{o % 4096} ' + ('' if 6 - int(OPT.get('l1n', '0')) <= l2_list.index(f) < 6 else OPT.get('l2f', 'sc1')))
            if h: fill_tok[f] = (vm, tok)
    ldsq = []
    def lds_issue(n=1):
        for _ in range(n):
            if not ldsq: return False
            f, h = ldsq.pop(0)
            sr = slot_reg[slot_of[f]] + 4 * h
            o = lds_list.index(f) * 2048 + 1024 * h
            tok = lg.issue(f'ds_read_b128 {r(sr,4)}, v{V_WLDS} offset:{o}')
            if h: fill_tok[f] = (lg, tok)
        return True
    def fill(f):
        fill_tok[f] = 'pending'
        (ldsq if f in lds_list else l2q).extend([(f, 0), (f, 1)])
    for f in l2_qk:
        fill(f)
    l2_issue(12); lds_issue(12)
    for i in range(0, 16, 2):
        A(f'v_mov_b64 v[{P+i}:{P+i+1}], 0')
    vm.waitall(); lg.waitall()
    stamp(9)
    def kvload():
        A(f's_load_dword s{S_PD}, s[4:5], s{S_KVF} glc\ns_load_dword s{S_PD+1}, s[4:5], s{S_KVF} offset:256 glc')
    def kvblock(lab, first):
        A(f's_mov_b32 s{S_SPIN}, 0')
        if not first:
            A(f's_branch {lab}c')
        A(f'{lab}l:\ns_sleep 4')
        kvload()
        A(f"""
        s_add_u32 s{S_SPIN}, s{S_SPIN}, 1
        s_cmp_gt_u32 s{S_SPIN}, {1<<17}
        s_cbranch_scc1 L_exit
        {lab}c:
        s_waitcnt lgkmcnt(0)
        s_min_u32 s{S_PD}, s{S_PD}, s{S_PD+1}
        s_cmp_le_u32 s{S_PD}, s{S_T}
        s_cbranch_scc1 {lab}l
        """)
    kvblock(pfx + '_kv0', True)
    A(f's_mov_b32 m0, {LDS_SELR+512}')
    stamp(8)
    A(f'v_add_u32 v{AS+4}, s{S_G1K}, v{V_L16}')
    for i in range(4):
        A(f'ds_write_b128 v{AS+4}, v[{GB+4*i}:{GB+4*i+3}] offset:{LDS_MEM+1024*i}')
    A('s_waitcnt lgkmcnt(0)')
    A(f'{pfx}_step:')
    inloop[0] = True
    A('s_barrier')
    stamp(0)
    aslots = [AS + 4, P + 16, AS]
    atok = {}
    def aread(s_, sl, key):
        atok[(key, s_)] = lg.issue(f'ds_read_b128 v[{sl}:{sl+3}], v{V_L16} offset:{LDS_MEM+1024*s_}')
    for s_ in range(3):
        aread(s_, aslots[s_], 'qk')
    KX, VX = P + 24, P + 32
    vm.issue(f'buffer_load_dwordx4 v[{KX}:{KX+3}], v{V_KXO}, s[4:7], s{S_KX} offen {KVF}')
    kx_tok = vm.issue(f'buffer_load_dwordx4 v[{KX+4}:{KX+7}], v{V_KXO}, s[4:7], s{S_KX} offen offset:128 {KVF}')
    VDEL = int(OPT.get('vdel', '4'))
    io_tok = vm.issue(f'buffer_store_dwordx4 v[{P+20}:{P+23}], v{V_L16}, s[4:7], s{S_PF} offen sc1')
    def smf(acc, areg, f):
        if f in reg_of:
            b = reg_of[f]
        else:
            ft = fill_tok.get(f)
            while ft == 'pending':
                (lds_issue if f in lds_list else l2_issue)(1)
                ft = fill_tok.get(f)
            if ft is not None:
                ft[0].wait(ft[1])
            b = slot_reg[slot_of[f]]
        A(f'v_smfmac_f32_16x16x64_bf16 v[{acc}:{acc+3}], v[{areg}:{areg+3}], {r(b,8)}, v{V_IDX}')
        if f not in reg_of:
            fill(nxt[f])
    for f in l2_qk:
        fill_tok.pop(f, None)
    QA = {('q', 0): P, ('q', 1): P + 4, ('k', 0): P + 8, ('k', 1): P + 12}
    VA = P + 16
    extra = []
    for s_ in range(10):
        tks = [atok[('qk', s_)]] + [fill_tok[f][1] for f in (('q', s_, 0), ('q', s_, 1)) if fill_tok.get(f)]
        lg.wait(max(tks))
        ar = aslots[s_ % 3]
        for k_, (m, t) in enumerate((('q', 0), ('q', 1), ('k', 0), ('k', 1)) if s_ < 9 else (('q', 0), ('k', 0), ('q', 1), ('k', 1))):
            smf(QA[(m, t)], ar, (m, s_, t))
            if s_ >= 8 and k_ < 2:
                i = 2 * (2 * (s_ - 8) + k_)
                A(f'v_mov_b64 v[{VA+i}:{VA+i+1}], 0')
            elif s_ < 6 or k_ >= 2:
                if not lds_issue(1) and (k_ == 2 or OPT.get('fast')): l2_issue(1)
            if k_ == 3 and s_ + 3 < 10:
                aread(s_ + 3, aslots[s_ % 3], 'qk')
            if s_ == VDEL and k_ == 0:
                vm.issue(f'buffer_load_dwordx4 v[{VX}:{VX+3}], v{V_VXO}, s[4:7], s{S_VX} offen {VVF}')
            if s_ == VDEL and k_ == 2:
                vx_tok = vm.issue(f'buffer_load_dwordx4 v[{VX+4}:{VX+7}], v{V_VXO}, s[4:7], s{S_VX} offen offset:16 {VVF}')
    vs = {'i': 0}
    def any_issue(n=1, pad=False):
        for _ in range(n):
            if ldsq: lds_issue(1)
            elif l2q: l2_issue(1)
            elif pad: A('s_nop 0')
    def v_step():
        i = vs['i']
        if i >= 10: return
        s_ = vorder[i]
        sl = AS + 4 * (i % 2)
        if i >= 2: lg.wait(atok[('v', s_)])
        smf(VA, sl, ('v', s_, 0)); smf(VA + 4, sl, ('v', s_, 1))
        if i + 2 < 10:
            aread(vorder[i + 2], sl, 'v')
        vs['i'] += 1
    stamp(1)
    v_step(); any_issue(1); v_step(); any_issue(1)
    A(f"""
    v_add_f32 v{P+0}, v{P+0}, v{P+1}
    v_add_f32 v{P+2}, v{P+2}, v{P+3}
    v_add_f32 v{P+8}, v{P+8}, v{P+9}
    v_add_f32 v{P+10}, v{P+10}, v{P+11}
    v_cvt_pk_bf16_f32 v{P+1}, v{P+0}, v{P+2}
    v_cvt_pk_bf16_f32 v{P+0}, v{P+8}, v{P+10}
    v_add_f32 v{P+4}, v{P+4}, v{P+5}
    v_add_f32 v{P+6}, v{P+6}, v{P+7}
    v_mfma_f32_16x16x16_bf16 v[{P+8}:{P+11}], v[{P+0}:{P+1}], v[{V_SELT}:{V_SELT+1}], 0
    v_add_f32 v{P+12}, v{P+12}, v{P+13}
    v_add_f32 v{P+14}, v{P+14}, v{P+15}
    v_cvt_pk_bf16_f32 v{P+3}, v{P+4}, v{P+6}
    v_cvt_pk_bf16_f32 v{P+2}, v{P+12}, v{P+14}
    """)
    any_issue(2, True)
    assert not ldsq
    A(f'v_mfma_f32_16x16x16_bf16 v[{P+12}:{P+15}], v[{P+2}:{P+3}], v[{V_SELT}:{V_SELT+1}], 0')
    v_step()
    any_issue(1, True)
    A('s_nop 3')
    X = P + 0
    for i in range(4):
        A(f'v_cvt_pk_bf16_f32 v{X+i}, v{P+8+i}, v{P+12+i}')
    vm.wait(kx_tok)
    any_issue(1, True)
    SX0, SX1, SMM = P + 4, P + 8, P + 12
    A(f"""
    v_mfma_f32_16x16x32_bf16 v[{SX0}:{SX0+3}], v[{KX}:{KX+3}], v[{X}:{X+3}], 0
    v_mfma_f32_16x16x32_bf16 v[{SX1}:{SX1+3}], v[{KX+4}:{KX+7}], v[{X}:{X+3}], 0
    v_mfma_f32_16x16x32_bf16 v[{SMM}:{SMM+3}], v[{X}:{X+3}], v[{X}:{X+3}], 0
    """)
    v_step()
    A(f'v_add_u32 v{KX}, s{S_MMD}, v{V_SWR}')
    any_issue(1, True)
    A(f's_mov_b64 exec, s[{S_MV}:{S_MV+1}]')
    lg.issue(f'ds_write2st64_b64 v{V_SWR}, v[{SX0}:{SX0+1}], v[{SX0+2}:{SX0+3}] offset0:0 offset1:2')
    lg.issue(f'ds_write2st64_b64 v{V_SWR}, v[{SX1}:{SX1+1}], v[{SX1+2}:{SX1+3}] offset0:5 offset1:7')
    A('s_nop 0')
    wtok = lg.issue(f'ds_write2st64_b32 v{KX}, v{SMM}, v{SMM+1} offset0:8 offset1:18')
    A('s_mov_b64 exec, -1')
    v_step(); l2_issue(1); v_step(); l2_issue(1)
    lg.wait(wtok)
    A('s_barrier')
    stamp(2)
    R0, R1, R2, R3, R4 = P + 4, P + 8, P + 12, KX, KX + 4
    rt = [lg.issue(f'ds_read_b128 v[{rb}:{rb+3}], v{V_SRD} offset:{512*i}') for i, rb in enumerate((R0, R1, R2, R3, R4))]
    A(f's_mov_b64 exec, s[{S_MK}:{S_MK+1}]')
    lg.issue(f'ds_write_b128 v{V_KMO}, v[{X}:{X+3}] offset:{LDS_MEM+2048}')
    A('s_mov_b64 exec, -1')
    v_step()
    l2_issue(2)
    lg.wait(rt[1])
    A(f"""
    v_add_f32 v{R0}, v{R0}, v{R0+2}
    v_add_f32 v{R0+1}, v{R0+1}, v{R0+3}
    v_pk_add_f32 v[{R1}:{R1+1}], v[{R1}:{R1+1}], v[{R1+2}:{R1+3}]
    """)
    lg.wait(rt[3])
    A(f"""
    v_pk_add_f32 v[{R2}:{R2+1}], v[{R2}:{R2+1}], v[{R2+2}:{R2+3}]
    v_pk_add_f32 v[{R3}:{R3+1}], v[{R3}:{R3+1}], v[{R3+2}:{R3+3}]
    v_pk_add_f32 v[{R0}:{R0+1}], v[{R0}:{R0+1}], v[{R1}:{R1+1}]
    """)
    lg.wait(rt[4])
    M0, M1 = R1, R1 + 1
    SV = [R0, R0 + 1, R2, R2 + 1, R4]
    A(f"""
    v_pk_add_f32 v[{R4}:{R4+1}], v[{R4}:{R4+1}], v[{R4+2}:{R4+3}]
    v_pk_add_f32 v[{R2}:{R2+1}], v[{R2}:{R2+1}], v[{R3}:{R3+1}]
    v_add_f32 v{R4}, v{R4}, v{R4+1}
    v_max3_f32 v{M0}, v{SV[0]}, v{SV[1]}, v{SV[2]}
    v_max3_f32 v{M0}, v{M0}, v{SV[3]}, v{SV[4]}
    """)
    any_issue(2, True)
    A(f"""
    v_max_f32_dpp v{M0}, v{M0}, v{M0} quad_perm:[2,3,0,1] row_mask:0xf bank_mask:0xf
    v_mov_b32 v{M1}, v{M0}
    """)
    v_step()
    A(f"""
    v_permlane16_swap_b32 v{M0}, v{M1}
    v_max_f32 v{M0}, v{M0}, v{M1}
    v_mov_b32 v{M1}, v{M0}
    """)
    l2_issue(1)
    v_step()
    A(f"""
    v_permlane32_swap_b32 v{M0}, v{M1}
    v_max_f32 v{M0}, v{M0}, v{M1}
    v_mul_f32 v{M0}, s{S_SC}, v{M0}
    """)
    for x in SV:
        A(f'v_fma_f32 v{x}, v{x}, s{S_SC}, -v{M0}')
    l2_issue(1)
    v_step()
    assert vs['i'] == 10
    for x in SV:
        A(f'v_exp_f32 v{x}, v{x}')
    PF, PM, ON = R3, X, AS
    any_issue(2, True)
    A(f"""
    v_cvt_pk_bf16_f32 v{PF}, v{SV[0]}, v{SV[1]}
    v_cvt_pk_bf16_f32 v{PF+1}, v{SV[2]}, v{SV[3]}
    v_mov_b32_dpp v{R4+1}, v{R4} quad_perm:[2,3,0,1] row_mask:0xf bank_mask:0xf
    v_mov_b64 v[{ON}:{ON+1}], s[{S_ONE}:{S_ONE+1}]
    v_mov_b32_dpp v{PF+2}, v{PF} quad_perm:[2,3,0,1] row_mask:0xf bank_mask:0xf
    v_mov_b32_dpp v{PF+3}, v{PF+1} quad_perm:[2,3,0,1] row_mask:0xf bank_mask:0xf
    v_mov_b64 v[{ON+2}:{ON+3}], s[{S_ONE}:{S_ONE+1}]
    v_cvt_pk_bf16_f32 v{PM}, v{R4}, v{R4+1}
    """)
    vm.wait(vx_tok)
    O0, O1, Z = P + 4, P + 8, P + 12
    A(f"""
    v_mfma_f32_16x16x32_bf16 v[{O0}:{O0+3}], v[{VX}:{VX+3}], v[{PF}:{PF+3}], 0
    v_add_f32 v{VA+0}, v{VA+0}, v{VA+1}
    v_add_f32 v{VA+2}, v{VA+2}, v{VA+3}
    v_mfma_f32_16x16x32_bf16 v[{Z}:{Z+3}], v[{ON}:{ON+3}], v[{PF}:{PF+3}], 0
    v_add_f32 v{VA+4}, v{VA+4}, v{VA+5}
    v_add_f32 v{VA+6}, v{VA+6}, v{VA+7}
    v_mov_b32 v{PM+1}, 0
    v_mfma_f32_16x16x32_bf16 v[{O1}:{O1+3}], v[{VX+4}:{VX+7}], v[{PF}:{PF+3}], 0
    v_cvt_pk_bf16_f32 v{VA+0}, v{VA+0}, v{VA+2}
    v_cvt_pk_bf16_f32 v{VA+1}, v{VA+4}, v{VA+6}
    v_mfma_f32_16x16x16_bf16 v[{Z}:{Z+3}], v[{ON}:{ON+1}], v[{PM}:{PM+1}], v[{Z}:{Z+3}]
    v_mov_b32 v{PM+2}, 0
    v_mov_b32 v{PM+3}, v{PM}
    v_mfma_f32_16x16x16_bf16 v[{O0}:{O0+3}], v[{VA}:{VA+1}], v[{PM}:{PM+1}], v[{O0}:{O0+3}]
    """)
    lg.issue(f'ds_write2_b32 v{V_VMO}, v{VA}, v{VA+1} offset0:0 offset1:4')
    A(f'v_mfma_f32_16x16x16_bf16 v[{O1}:{O1+3}], v[{VA}:{VA+1}], v[{PM+2}:{PM+3}], v[{O1}:{O1+3}]')
    any_issue(2, True)
    zl = [24, 32, 34, 36, 38, 26, 28, 30] + list(range(18, 24, 2))
    A(f"""
    v_mov_b64 v[{P+zl[0]}:{P+zl[0]+1}], 0
    v_rcp_f32 v{Z}, v{Z}
    v_mov_b64 v[{P+zl[1]}:{P+zl[1]+1}], 0
    v_mov_b32 v{Z+1}, v{Z}
    v_mov_b64 v[{P+zl[2]}:{P+zl[2]+1}], 0
    v_pk_mul_f32 v[{O0}:{O0+1}], v[{O0}:{O0+1}], v[{Z}:{Z+1}]
    v_pk_mul_f32 v[{O0+2}:{O0+3}], v[{O0+2}:{O0+3}], v[{Z}:{Z+1}]
    v_pk_mul_f32 v[{O1}:{O1+1}], v[{O1}:{O1+1}], v[{Z}:{Z+1}]
    v_pk_mul_f32 v[{O1+2}:{O1+3}], v[{O1+2}:{O1+3}], v[{Z}:{Z+1}]
    """)
    for i in range(4):
        A(f'v_cvt_pk_bf16_f32 v{AS+4+i}, v{O0+i}, v{O1+i}')
    A(f's_mov_b64 exec, s[{S_MV}:{S_MV+1}]')
    lg.issue(f'ds_write_b128 v{V_OWR}, v[{AS+4}:{AS+7}] offset:{LDS_MEM}')
    A('s_mov_b64 exec, -1')
    l2_issue(2)
    for i in list(range(0, 18, 2)) + zl[3:6]:
        A(f'v_mov_b64 v[{P+i}:{P+i+1}], 0')
    l2_issue(1)
    vm.wait(io_tok)
    lg.waitall()
    A('s_barrier')
    stamp(3)
    ot = [lg.issue(f'ds_read_b128 v[{AS+4*s_}:{AS+4*s_+3}], v{V_L16} offset:{LDS_MEM+1024*s_}') for s_ in (0, 1)]
    A(f's_cmp_eq_u32 s{S_T}, {NSTEP-1}\ns_cbranch_scc1 {pfx}_fin')
    for i in zl[6:]:
        A(f'v_mov_b64 v[{P+i}:{P+i+1}], 0')
    l2_issue(3)
    assert not l2q
    pk = []
    def pack(t, dst):
        b = P + 4 * t
        pk.extend([f'v_add_f32 v{b}, v{b}, v{b+1}', f'v_add_f32 v{b+2}, v{b+2}, v{b+3}', f'v_cvt_pk_bf16_f32 v{dst}, v{b}, v{b+2}'])
        if t in (0, 4, 8):
            pk.append(f'v_bfi_b32 v{dst}, 1, s{S_T}, v{dst}')
    def pkpop(n):
        for _ in range(n):
            if pk: A(pk.pop(0))
    A(f's_add_u32 s{S_T0}, s{S_INB}, {8*4096}')
    lg.wait(ot[0])
    NOF = [int(OPT.get('nof', '6'))]
    def ofill():
        if NOF[0] > 0:
            NOF[0] -= 1; l2_issue(1)
    vm.wait(fill_tok[('o', 0, 1)][1])
    for t in range(4):
        if t == 2: vm.wait(fill_tok[('o', 0, 3)][1])
        smf(P + 4 * t, AS, ('o', 0, t))
        if t & 1: ofill()
    lg.wait(ot[1])
    vm.wait(fill_tok[('o', 0, 9)][1])
    for t in (8, 9): smf(P + 4 * t, AS, ('o', 0, t))
    ofill()
    for t in range(4):
        smf(P + 4 * t, AS + 4, ('o', 1, t))
        if t & 1: ofill()
    for t in range(4): pack(t, P + t)
    for t in range(4, 8):
        smf(P + 4 * t, AS, ('o', 0, t))
        if t == 4: ofill()
        if t == 5: A('s_nop 0')
        if t >= 5: pkpop(2)
    pkpop(1)
    ofill()
    for t in range(4, 8):
        smf(P + 4 * t, AS + 4, ('o', 1, t)); pkpop(2)
        if t == 6:
            assert not pk
            vm.issue(f'buffer_store_dwordx4 v[{P}:{P+3}], v{V_PUBA}, s[4:7], s{S_INB} offen {hop_sc}')
            for t2 in range(4, 8): pack(t2, P + 16 + (t2 - 4))
    for t in (8, 9):
        smf(P + 4 * t, AS + 4, ('o', 1, t)); pkpop(2)
    pkpop(7)
    assert not pk
    vm.issue(f'buffer_store_dwordx4 v[{P+16}:{P+19}], v{V_PUBA}, s[4:7], s{S_T0} offen {hop_sc}')
    pack(8, P + 32); pack(9, P + 33); pkpop(7)
    vm.issue(f'buffer_store_dwordx2 v[{P+32}:{P+33}], v{V_PUBC}, s[4:7], s{S_INB} offen {hop_sc}')
    stamp(4); hstamp(1)
    fills = list(l2q); l2q.clear()
    W1 = min(len(fills), int(OPT.get('w1', '3')))
    lds_issue(12)
    l2q.extend(fills[:W1]); l2_issue(W1)
    fills = fills[W1:]
    def emit_fills(lst):
        l2q.extend(lst); l2_issue(len(lst))
    def io_wave(sk):
        for i in range(4):
            A(f'buffer_store_dwordx4 v[{P+4*i}:{P+4*i+3}], v{V_L16}, s[4:7], s{sk} offen offset:{1024*i} sc1')
    RB2 = [P + 4, P + 8, P + 12, P + 24]
    RD = P + 28
    A(f"""
    v_add_u32 v{AS+5}, s47, v{V_L16}
    v_and_b32 v{AS+4}, 0xf0, v{V_L16}
    ds_read_b128 v[{P+20}:{P+23}], v{AS+5}
    ds_read_b128 v[{AS}:{AS+3}], v{AS+4} offset:{LDS_SELR}
    s_add_u32 s{S_T2}, s{S_MBASE}, s{S_MCUR}
    s_add_u32 s{S_T3}, s{S_MBASE}, s{S_MRE}
    s_add_u32 s{S_T}, s{S_T}, 1
    s_cmp_lt_u32 s{S_T}, {L.SPLIT}
    s_cselect_b32 s{S_KVM}, s{S_KVM}, 0
    s_xor_b32 s{S_KVF}, s{S_KVF}, s{S_KVM}
    s_mov_b32 s{S_MRE}, s{S_MCUR}
    s_add_u32 s{S_MCUR}, s{S_MCUR}, 10240
    s_cmp_eq_u32 s{S_MCUR}, {3*10240}
    s_cselect_b32 s{S_MCUR}, 0, s{S_MCUR}
    s_add_u32 s{S_KX}, s{S_KX}, {0 if OPT.get('samekv') else 32*8192}
    s_add_u32 s{S_VX}, s{S_VX}, {0 if OPT.get('samekv') else 32*8192}
    s_mov_b32 s{S_PF}, s{S_KM}
    s_add_u32 s{S_KM}, s{S_KM}, {32*4096}
    """)
    A('s_waitcnt lgkmcnt(0)\ns_barrier')
    hstamp(2)
    kvload()
    A(f's_cmp_eq_u32 s{S_WAVE}, 3\ns_cbranch_scc1 {pfx}_io')
    A(f"""
    s_cmp_ge_u32 s{S_UNIT}, 80
    s_cbranch_scc1 {pfx}_nr
    s_mov_b32 s{S_SPIN}, 0
    """)
    if OPT.get('ack', '1') == '1':
        A(f's_waitcnt vmcnt({0 if OPT.get("nol2") in ("1","q") else W1})')
    hstamp(3)
    if OPT.get('d1'): A(f's_sleep {OPT["d1"]}')
    A(f'{pfx}_p1:')
    for i in range(4):
        A(f'buffer_load_dwordx4 v[{RB2[i]}:{RB2[i]+3}], v{V_L16}, s[4:7], s{S_RED} offen offset:{1024*i} sc1')
    A(f's_add_u32 s{S_SPIN}, s{S_SPIN}, 1')
    if STAMP: A('s_add_u32 s78, s78, 1')
    for i in range(4):
        A(f's_waitcnt vmcnt({3-i})')
        c = '0' if i == 0 else f'v[{RD}:{RD+3}]'
        A(f'v_mfma_f32_16x16x32_bf16 v[{RD}:{RD+3}], v[{AS}:{AS+3}], v[{RB2[i]}:{RB2[i]+3}], {c}')
        if i & 1:
            A(f'v_bitop3_b32 v{P+32+(i>>1)}, v{RB2[i-1]}, v{RB2[i]}, s{S_T} bitop3:0x42')
    hstamp(4)
    A(f"""
    s_cmp_gt_u32 s{S_SPIN}, {SPIN_CAP}
    s_cbranch_scc1 {pfx}_p1to
    v_bitop3_b32 v{P+32}, v{P+32}, v{P+33}, 1 bitop3:0x80
    v_cmp_eq_u32 vcc, 0, v{P+32}
    s_cbranch_vccnz {pfx}_p1
    {pfx}_p1ok:
    v_mov_b64 v[{P+36}:{P+37}], -1
    s_nop 0
    v_add_f32_dpp v{RD}, v{RD}, v{RD} row_ror:8 row_mask:0xf bank_mask:0xf
    v_add_f32_dpp v{RD+1}, v{RD+1}, v{RD+1} row_ror:8 row_mask:0xf bank_mask:0xf
    v_add_f32_dpp v{RD+2}, v{RD+2}, v{RD+2} row_ror:8 row_mask:0xf bank_mask:0xf
    v_add_f32_dpp v{RD+3}, v{RD+3}, v{RD+3} row_ror:8 row_mask:0xf bank_mask:0xf
    v_cvt_pk_bf16_f32 v{RD}, v{RD}, v{RD+1}
    v_cvt_pk_bf16_f32 v{RD+1}, v{RD+2}, v{RD+3}
    s_mov_b64 exec, s[{S_MP}:{S_MP+1}]
    buffer_store_dwordx2 v[{RD}:{RD+1}], v{V_PUB2}, s[4:7], s{S_T2} offen {hop_sc}
    """)
    hstamp(5)
    A(f"""
    buffer_store_dwordx2 v[{P+36}:{P+37}], v{V_PUB2}, s[4:7], s{S_T3} offen {hop_sc}
    s_mov_b64 exec, -1
    """)
    A(f'{pfx}_g2:')
    stamp(5)
    emit_fills(fills)
    for i in range(0, 16, 2):
        A(f'v_mov_b64 v[{P+i}:{P+i+1}], 0')
    if OPT.get('ra') == 'g2':
        pass
    GT = P + 16
    A(f"""
    v_add_u32 v{AS+4}, s{S_G1K}, v{V_L16}
    s_add_u32 s{S_T2}, s{S_T2}, s{S_GOFF}
    s_mov_b32 s{S_SPIN}, 0
    """)
    hstamp(6)
    if OPT.get('d2'): A(f's_sleep {OPT["d2"]}')
    A(f'{pfx}_p2:')
    for i in range(4):
        A(f'buffer_load_dwordx4 v[{GB+4*i}:{GB+4*i+3}], v{V_GATH}, s[4:7], s{S_T2} offen offset:{128*i} sc1')
    if STAMP: A('s_add_u32 s79, s79, 1')
    A(f"""
    s_add_u32 s{S_SPIN}, s{S_SPIN}, 1
    s_cmp_gt_u32 s{S_SPIN}, {SPIN_CAP}
    s_cbranch_scc1 {pfx}_p2to
    s_waitcnt vmcnt(3)
    ds_write_b128 v{AS+4}, v[{GB}:{GB+3}] offset:{LDS_MEM}
    v_max3_u32 v{GT}, v{GB}, v{GB+1}, v{GB+2}
    s_waitcnt vmcnt(2)
    ds_write_b128 v{AS+4}, v[{GB+4}:{GB+7}] offset:{LDS_MEM+1024}
    v_max3_u32 v{GT}, v{GT}, v{GB+3}, v{GB+4}
    v_max3_u32 v{GT+1}, v{GB+5}, v{GB+6}, v{GB+7}
    s_waitcnt vmcnt(1)
    ds_write_b128 v{AS+4}, v[{GB+8}:{GB+11}] offset:{LDS_MEM+2048}
    v_max3_u32 v{GT}, v{GT}, v{GB+8}, v{GB+9}
    v_max3_u32 v{GT+1}, v{GT+1}, v{GB+10}, v{GB+11}
    s_waitcnt vmcnt(0)
    ds_write_b128 v{AS+4}, v[{GB+12}:{GB+15}] offset:{LDS_MEM+3072}
    v_max3_u32 v{GT}, v{GT}, v{GB+12}, v{GB+13}
    v_max3_u32 v{GT+1}, v{GT+1}, v{GB+14}, v{GB+15}
    v_max_u32 v{GT}, v{GT}, v{GT+1}
    v_cmp_eq_u32 vcc, -1, v{GT}
    s_cbranch_vccnz {pfx}_p2
    {pfx}_p2ok:
    """)
    stamp(6)
    vm.reset(); lg.reset()
    kvblock(pfx + '_kv1', False)
    stamp(7)
    A(f"""
    s_branch {pfx}_step
    {pfx}_nr:
    s_sleep {OPT.get('d3', '8')}
    s_branch {pfx}_g2
    {pfx}_io:
    """)
    if NBS: stamp(5)
    A(f"""
    s_atomic_add s{S_FD}, s[4:5], s{S_FLAG}
    """)
    emit_fills(fills)
    for i in range(0, 16, 2):
        A(f'v_mov_b64 v[{P+i}:{P+i+1}], 0')
    A(f"""
    s_waitcnt vmcnt(0) lgkmcnt(0)
    s_mov_b32 s{S_FD}, 1
    s_branch {pfx}_p2ok
    {pfx}_p1to:
    s_mov_b32 s{S_ERR}, 1
    v_mov_b64 v[{P+36}:{P+37}], -1
    v_mov_b64 v[{P+38}:{P+39}], -1
    s_nop 7
    s_branch {pfx}_p1ok
    {pfx}_p2to:
    s_mov_b32 s{S_ERR}, 2
    s_waitcnt vmcnt(0)
    s_branch {pfx}_p2ok
    {pfx}_fin:
    v_add_u32 v{P}, s47, v{V_L16}
    ds_read_b128 v[{P+20}:{P+23}], v{P}
    s_atomic_add s{S_FD}, s[4:5], s{S_FLAG}
    s_waitcnt lgkmcnt(0)
    buffer_store_dwordx4 v[{P+20}:{P+23}], v{V_L16}, s[4:7], s{S_KM} offen sc1
    s_waitcnt vmcnt(0)
    s_barrier
    s_atomic_add s{S_FD}, s[4:5], s{S_FLAG}
    s_waitcnt vmcnt(0) lgkmcnt(0)
    """)

def finish2(A, vm, g, base, tok, tb):
    vm.wait(tok)
    for i in range(8):
        A(f'v_perm_b32 v{tb+i}, v{base+2*i+1}, v{base+2*i}, s48')
        A(f'v_perm_b32 v{tb+8+i}, v{base+2*i+1}, v{base+2*i}, s49')
    for i in range(0, 16, 2):
        A(f'v_mov_b64 v[{base+i}:{base+i+1}], v[{tb+i}:{tb+i+1}]')

def f32bits(x):
    import struct
    return struct.unpack('<I', struct.pack('<f', x))[0]
```

```python
import sys, os
from asm import *
import layout as L
import rrole, groles
NAME = 'interleave_layers__memory_aug_recurrent_mem_tr__mixer_s_mlp__prompt'
A = Asm()
A.launch('init_kernel', 640, 256, 2048)
A.begin('init_kernel')
SENT = 384 * 1024
A(f'''
s_cmp_ge_u32 s2, 640
s_cbranch_scc1 I_done
s_load_dwordx2 s[4:5], s[0:1], 112
s_load_dwordx2 s[8:9], s[0:1], 0
s_mov_b32 s6, {L.WS_BYTES}
s_mov_b32 s7, 0x20000
s_mov_b32 s10, {2048*1280}
s_mov_b32 s11, 0x20000
s_lshl_b32 s3, s2, 8
v_add_u32 v1, s3, v0
; frag index f = c>>6 = 4*wg + wave ; b = wg/10 ; s = 4*(wg%10) + wave
s_mul_i32 s12, s2, 6554
s_lshr_b32 s12, s12, 16              ; b
s_mov_b32 s15, s12
s_mul_i32 s13, s12, 10
s_sub_u32 s13, s2, s13
s_lshl_b32 s13, s13, 7
s_mul_i32 s12, s12, {32*1280}
s_add_u32 s12, s12, s13
v_and_b32 v2, 31, v0
v_mul_u32_u24 v2, 1280, v2
v_lshrrev_b32 v3, 5, v0
v_lshl_add_u32 v2, v3, 4, v2
v_lshlrev_b32 v4, 4, v1
s_waitcnt lgkmcnt(0)
buffer_load_dwordx4 v[8:11], v2, s[8:11], s12 offen
v_mov_b32 v12, -1
v_mov_b32 v13, -1
v_mov_b32 v14, -1
v_mov_b32 v15, -1
v_mov_b32 v16, 0
v_mov_b32 v17, 0
v_mov_b32 v18, 0
v_mov_b32 v19, 0
s_cmp_ge_u32 s2, {SENT//4096}
s_cbranch_scc1 I_nosent
s_mov_b32 s14, {L.R_INBOX(0)}
buffer_store_dwordx4 v[12:15], v4, s[4:7], s14 offen
s_mov_b32 s14, {L.R_INBOX(1)}
buffer_store_dwordx4 v[12:15], v4, s[4:7], s14 offen
I_nosent:
s_cmp_ge_u32 s2, 10
s_cbranch_scc1 I_nozero
s_mov_b32 s14, {L.H(0)}
buffer_store_dwordx4 v[16:19], v4, s[4:7], s14 offen
s_mov_b32 s14, {L.H(0)+65*L.BLK}
buffer_store_dwordx4 v[16:19], v4, s[4:7], s14 offen
s_mov_b32 s14, {L.H(1)}
buffer_store_dwordx4 v[16:19], v4, s[4:7], s14 offen
s_mov_b32 s14, {L.H(1)+65*L.BLK}
buffer_store_dwordx4 v[16:19], v4, s[4:7], s14 offen
I_nozero:
s_cmp_ge_u32 s2, {2*L.FLAYER//4096}
s_cbranch_scc1 I_nofl
s_mov_b32 s14, {L.FLAGS}
buffer_store_dwordx4 v[16:19], v4, s[4:7], s14 offen
I_nofl:
s_lshl_b32 s14, s15, 13              ; b*(SBLK-BLK)
s_add_u32 s14, s14, {L.X(0)}
s_waitcnt vmcnt(0)
buffer_store_dwordx4 v[8:11], v4, s[4:7], s14 offen
; stats: tile = 2*(wg%10) + (wave>>1), 32 columns = 4 (wave,hf) pieces
v_lshlrev_b32 v12, 16, v8
v_and_b32 v13, 0xffff0000, v8
v_lshlrev_b32 v14, 16, v9
v_and_b32 v15, 0xffff0000, v9
v_lshlrev_b32 v16, 16, v10
v_and_b32 v17, 0xffff0000, v10
v_lshlrev_b32 v18, 16, v11
v_and_b32 v19, 0xffff0000, v11
v_pk_add_f32 v[20:21], v[12:13], v[14:15]
v_pk_add_f32 v[22:23], v[16:17], v[18:19]
v_pk_add_f32 v[20:21], v[20:21], v[22:23]
v_pk_mul_f32 v[22:23], v[12:13], v[12:13]
v_pk_fma_f32 v[22:23], v[14:15], v[14:15], v[22:23]
v_pk_fma_f32 v[22:23], v[16:17], v[16:17], v[22:23]
v_pk_fma_f32 v[22:23], v[18:19], v[18:19], v[22:23]
v_add_f32 v20, v20, v21
v_add_f32 v21, v22, v23
v_lshlrev_b32 v5, 3, v0
ds_write_b64 v5, v[20:21]
s_waitcnt lgkmcnt(0)
s_barrier
v_cmp_gt_u32 vcc, 64, v0
s_and_saveexec_b64 s[16:17], vcc
s_cbranch_execz I_done
v_and_b32 v6, 31, v0
v_lshl_add_u32 v6, v3, 7, v6
v_lshlrev_b32 v6, 3, v6
ds_read_b64 v[12:13], v6
ds_read_b64 v[14:15], v6 offset:256
ds_read_b64 v[16:17], v6 offset:512
ds_read_b64 v[18:19], v6 offset:768
s_mul_i32 s14, s15, {L.SBLK}
s_lshl_b32 s13, s13, 2               ; (wg%10)*512
s_add_u32 s14, s14, s13
s_add_u32 s14, s14, {L.X(0)+40960}
s_waitcnt lgkmcnt(0)
v_pk_add_f32 v[12:13], v[12:13], v[14:15]
v_pk_add_f32 v[16:17], v[16:17], v[18:19]
v_pk_add_f32 v[12:13], v[12:13], v[16:17]
buffer_store_dwordx2 v[12:13], v5, s[4:7], s14 offen
s_waitcnt vmcnt(0)
I_done:
s_endpgm
''')
A.end('init_kernel', 24, 24)
ROLE = dict(NONE=0, R=1, QK=2, V=3, AT=4, O=5, RL=6, M1=7, M2=8, M3=9, M4=10)
LAB = {1: 'RR', 2: 'RQK', 3: 'RV', 4: 'RAT', 5: 'RO', 6: 'RRL', 7: 'RM1', 8: 'RM2', 9: 'RM3', 10: 'RM4'}
def ent(role, idx=0, layer=0, grp=0): return ROLE[role] | idx << 8 | layer << 16 | grp << 20
def qkv(i, grp): return ent('QK' if i < 32 else 'V', i, 0, grp)
tab = [[0, 0] for _ in range(256)]
for i in range(32):
    tab[i][0] = ent('R', i, 0); tab[32 + i][0] = ent('R', i, 1)
def o_set(l, k): return [ent('O', 4 * j + k, l) for j in range(5)]
def lst(role, n, l, grp=0, first=0): return [ent(role, first + i, l, grp) for i in range(n)]
ded = [
    o_set(0, 0) + o_set(0, 1) + lst('AT', 4, 0) + [0, 0],
    o_set(0, 2) + o_set(0, 3) + lst('AT', 4, 0, first=4) + [0, 0],
    lst('RL', 5, 0) + lst('M1', 5, 0) + lst('M2', 5, 0) + [0],
    lst('M3', 14, 0) + lst('AT', 2, 1),
    lst('M4', 5, 0, 0) + lst('M4', 5, 0, 1) + lst('AT', 6, 1, first=2),
    o_set(1, 0) + o_set(1, 1) + o_set(1, 2) + [0],
]
sec = [
    o_set(1, 3) + lst('RL', 3, 1),
    lst('M1', 5, 1) + lst('RL', 2, 1, first=3) + [0],
    lst('M2', 5, 1) + lst('M3', 3, 1),
    lst('M3', 8, 1, first=3),
    lst('M4', 5, 1, 0) + lst('M3', 3, 1, first=11),
    lst('M4', 5, 1, 1) + [0, 0, 0],
]
for x in range(6):
    base = 64 + 32 * x
    assert len(ded[x]) == 16 and len(sec[x]) == 8
    for i in range(8):
        q = (x + 6 * i)
        tab[base + i][0] = qkv(q, 0)
        tab[base + 8 + i] = [qkv(q, 1), sec[x][i]]
    for i in range(16):
        tab[base + 16 + i][0] = ded[x][i]
A.launch('main_kernel', 256, 256, 160 * 1024)
A.begin('main_kernel')
A(f'''
s_cmp_ge_u32 s2, 256
s_cbranch_scc1 L_done
s_memrealtime s[82:83]
s_memtime s[86:87]
s_load_dwordx2 s[4:5], s[0:1], 112
s_load_dwordx2 s[90:91], s[0:1], 104
s_getreg_b32 s15, hwreg(HW_REG_XCC_ID)
s_and_b32 s15, s15, 7
v_lshrrev_b32 v1, 6, v0
s_nop 0
v_readfirstlane_b32 s12, v1
s_waitcnt lgkmcnt(0)
s_mov_b32 s3, s86
s_mov_b32 s6, {L.WS_BYTES}
s_mov_b32 s7, 0x20000
v_mov_b32 v3, 1
s_lshl_b32 s16, s15, 2
v_mov_b32 v4, s16
v_cmp_eq_u32 vcc, 0, v0
s_and_saveexec_b64 s[18:19], vcc
s_cbranch_execz L_norank
global_atomic_add v5, v4, v3, s[90:91] sc0 sc1
s_waitcnt vmcnt(0)
v_mov_b32 v6, 0
ds_write_b32 v6, v5
s_waitcnt lgkmcnt(0)
L_norank:
s_mov_b64 exec, s[18:19]
s_barrier
v_mov_b32 v6, 0
ds_read_b32 v5, v6
s_waitcnt lgkmcnt(0)
v_readfirstlane_b32 s13, v5
s_barrier
s_cmp_ge_u32 s13, 32
s_cbranch_scc1 L_done
s_lshl_b32 s15, s15, 5
s_add_u32 s94, s15, s13            ; slot
s_getpc_b64 s[16:17]
L_pc:
s_add_u32 s16, s16, role_table-L_pc
s_addc_u32 s17, s17, 0
s_lshl_b32 s18, s94, 3
s_load_dwordx2 s[96:97], s[16:17], s18
s_mov_b32 s95, 0
s_waitcnt lgkmcnt(0)
L_disp:
s_bfe_u32 s13, s96, 0x80008
s_bfe_u32 s14, s96, 0x40010
s_bfe_u32 s15, s96, 0x40014
s_and_b32 s16, s96, 0xff
''')
stamp_init(A)
for k, lab in LAB.items():
    A(f's_cmp_eq_u32 s16, {k}\ns_cbranch_scc1 {lab}')
A('s_branch L_fin')
A('''
L_next:
''')
if STAMP:
    A(f'''
    s_memrealtime s[84:85]
    s_memtime s[86:87]
    s_waitcnt lgkmcnt(0)
    s_sub_u32 s86, s86, s3
    v_mov_b32 v12, s82
    v_mov_b32 v13, s84
    v_mov_b32 v14, s96
    v_mov_b32 v15, s86
    v_mov_b32 v26, s78
    v_mov_b32 v27, s79
    s_lshl_b32 s16, s94, 9
    s_lshl_b32 s17, s95, 8
    s_add_u32 s16, s16, s17
    s_lshl_b32 s17, s12, 6
    s_add_u32 s16, s16, s17
    s_add_u32 s16, s16, {L.DBG}
    v_mov_b32 v9, 0
    ''')
    for k in range(10):
        A(f'v_mov_b32 v{16+k}, s{64+k}')
    A('''
    s_mov_b64 exec, 1
    buffer_store_dwordx4 v[12:15], v9, s[4:7], s16 offen
    buffer_store_dwordx4 v[16:19], v9, s[4:7], s16 offen offset:16
    buffer_store_dwordx4 v[20:23], v9, s[4:7], s16 offen offset:32
    buffer_store_dwordx4 v[24:27], v9, s[4:7], s16 offen offset:48
    s_mov_b64 exec, -1
    s_waitcnt vmcnt(0)
    s_add_u32 s95, s95, 1
    ''')
A('''
s_waitcnt vmcnt(0) lgkmcnt(0)
s_mov_b32 s96, s97
s_mov_b32 s97, 0
s_branch L_disp
L_exit:
v_mov_b32 v1, s96
v_mov_b32 v2, 64
s_mov_b64 exec, 1
global_store_dword v2, v1, s[90:91]
s_waitcnt vmcnt(0)
L_fin:
L_done:
s_endpgm
''')
A('RR:')
rrole.gen_R(A)
A('s_branch L_next')
groles.gen_all_gemms(A)
groles.gen_rl(A)
groles.gen_at(A)
A('s_endpgm')
A.lines.append('.p2align 6')
A.lines.append('.type role_table,@object')
A.lines.append('role_table:')
for e in tab:
    A.lines.append(f'    .long {e[0]:#x}, {e[1]:#x}')
A.end('main_kernel', 512, accum=256)
import haz
A.lines, nfix = haz.run(A.lines, verbose=bool(os.environ.get('HAZV')))
hdr = open(f'cdna_kernels/{NAME}.s.ref').read().split('\n')
hdr = [l for l in hdr if l.startswith(';') and '@launch' not in l and 'Override' not in l and 'grid=ceil' not in l]
out = sys.argv[1] if len(sys.argv) > 1 else f'cdna_kernels/{NAME}.s'
open(out, 'w').write(A.text('\n'.join(hdr)))
```

```python
from asm import *
import layout as L
import math, struct
def f32bits(x): return struct.unpack('<I', struct.pack('<f', x))[0]
def fh(x): return hex(f32bits(x))

S_WAVE, S_IDX, S_LAYER, S_GRP = 12, 13, 14, 15
S_B, S_BSTEP, S_SRC, S_DST, S_DEP, S_FLAG, S_PRE, S_SPIN, S_BUF, S_DEPM, S_PEND, S_DEP2, S_STD, S_NB = range(16, 30)
S_T0, S_T1, S_T2, S_T3 = 30, 31, 32, 33
S_R1, S_R2, S_DST2, S_NEED, S_DS, S_DL = 34, 35, 36, 37, 38, 39
S_C0, S_C1, S_C2, S_C3 = 40, 41, 42, 43
S_END = 46
S_HI = 44
S_PD = 48
SPIN_CAP = 1 << 16
EXIT = 'L_exit'

def lay(A, dst, fn, extra=0):
    A(f's_mul_i32 s{dst}, s{S_LAYER}, {fn(1)-fn(0)}\ns_add_u32 s{dst}, s{dst}, {fn(0)+extra}')

def sload(A, spec, saddr, extra=None):
    n = sum(spec)
    for i in range(n):
        A(f's_load_dword s{S_PD+i}, s[4:5], s{saddr} offset:{128*i} glc')
    if extra is not None:
        A(f's_load_dword s{S_PD+n}, s[4:5], s{extra} glc')
        n += 1
    return n
def smin(A, n):
    k = n
    regs = list(range(S_PD, S_PD + n))
    while len(regs) > 1:
        nx = []
        for i in range(0, len(regs) - 1, 2):
            A(f's_min_u32 s{regs[i]}, s{regs[i]}, s{regs[i+1]}')
            nx.append(regs[i])
        if len(regs) & 1: nx.append(regs[-1])
        regs = nx
def spoll(A, spec, saddr, sneed, extra=None, use=None, sleep=1):
    l0, l1 = A.label('P'), A.label('P')
    A(f's_mov_b32 s{S_SPIN}, 0\n{l0}:')
    n = sload(A, spec, saddr, extra)
    A('s_waitcnt lgkmcnt(0)')
    smin(A, use or n)
    A(f'''
    s_cmp_ge_u32 s{S_PD}, s{sneed}
    s_cbranch_scc1 {l1}
    s_add_u32 s{S_SPIN}, s{S_SPIN}, 1
    s_cmp_gt_u32 s{S_SPIN}, {SPIN_CAP}
    s_cbranch_scc1 {EXIT}
    ''')
    if sleep: A(f's_sleep {sleep}')
    A(f's_branch {l0}\n{l1}:')

def vpoll(A, n, saddr, sneed, vt, extra=None, sleep=int(os.environ.get("PSL","1"))):
    l0, l1 = A.label('P'), A.label('P')
    A(f'''
    v_mbcnt_lo_u32_b32 v{vt}, -1, 0
    v_min_u32 v{vt}, {n-1}, v{vt}
    v_lshlrev_b32 v{vt}, 7, v{vt}
    ''')
    if extra is not None:
        A(f's_sub_u32 s{S_SPIN}, s{extra}, s{saddr}\ns_add_u32 s{S_SPIN}, s{S_SPIN}, 4096\nv_add_u32 v{vt}, 4096, v{vt}\nv_writelane_b32 v{vt}, s{S_SPIN}, 31\ns_sub_u32 s{saddr}, s{saddr}, 4096')
    A(f'''
    s_mov_b32 s{S_SPIN}, 0
    s_mov_b64 exec, 0xffffffff
    {l0}:
    buffer_load_dword v{vt+1}, v{vt}, s[4:7], s{saddr} offen sc1
    s_waitcnt vmcnt(0)
    v_cmp_gt_u32 vcc, s{sneed}, v{vt+1}
    s_cbranch_vccz {l1}
    s_add_u32 s{S_SPIN}, s{S_SPIN}, 1
    s_cmp_gt_u32 s{S_SPIN}, {SPIN_CAP}
    s_cbranch_scc1 {EXIT}
    ''')
    if sleep: A(f's_sleep {sleep}')
    A(f's_branch {l0}\n{l1}:\ns_mov_b64 exec, -1')

S_LASTF, S_FD = 47, 63
def put_flag(A, vtmp, vzero, sval):
    A(f'''
    s_sub_u32 s{S_FD}, s{sval}, s{S_LASTF}
    s_mov_b32 s{S_LASTF}, s{sval}
    s_atomic_add s{S_FD}, s[4:5], s{S_FLAG}
    ''')

def emit_stats(A, a0, t, vl8, ssoff):
    A(f'v_pk_add_f32 v[{t}:{t+1}], v[{a0}:{a0+1}], v[{a0+2}:{a0+3}]')
    A(f'v_pk_mul_f32 v[{t+2}:{t+3}], v[{a0}:{a0+1}], v[{a0}:{a0+1}]')
    A(f'v_pk_fma_f32 v[{t+2}:{t+3}], v[{a0+2}:{a0+3}], v[{a0+2}:{a0+3}], v[{t+2}:{t+3}]')
    for i in range(4, 16, 2):
        A(f'v_pk_add_f32 v[{t}:{t+1}], v[{t}:{t+1}], v[{a0+i}:{a0+i+1}]')
        A(f'v_pk_fma_f32 v[{t+2}:{t+3}], v[{a0+i}:{a0+i+1}], v[{a0+i}:{a0+i+1}], v[{t+2}:{t+3}]')
    A(f'''
    v_add_f32 v{t}, v{t}, v{t+1}
    v_add_f32 v{t+1}, v{t+2}, v{t+3}
    v_mov_b32 v{t+2}, v{t}
    v_mov_b32 v{t+3}, v{t+1}
    s_nop 1
    v_permlane32_swap_b32 v{t}, v{t+2}
    v_permlane32_swap_b32 v{t+1}, v{t+3}
    v_pk_add_f32 v[{t}:{t+1}], v[{t}:{t+1}], v[{t+2}:{t+3}]
    s_mov_b64 exec, 0xffffffff
    buffer_store_dwordx2 v[{t}:{t+1}], v{vl8}, s[4:7], s{ssoff} offen sc1
    s_mov_b64 exec, -1
    ''')

def wait_init(A, vt):
    l0, l1 = A.label('P'), A.label('P')
    A(f'''
    s_mov_b32 s{S_SPIN}, 0
    v_mov_b32 v{vt}, 128
    {l0}:
    global_load_dword v{vt+1}, v{vt}, s[90:91] sc1
    s_waitcnt vmcnt(0)
    v_cmp_gt_u32 vcc, 0xc0, v{vt+1}
    s_cbranch_vccz {l1}
    s_add_u32 s{S_SPIN}, s{S_SPIN}, 1
    s_cmp_gt_u32 s{S_SPIN}, {SPIN_CAP}
    s_cbranch_scc1 {EXIT}
    s_sleep 16
    s_branch {l0}
    {l1}:
    ''')

class G: pass

def gen_gemm(A, name, KS, NT, form='T', ln=0, epi='store', wsel=None, dbuf=True, shift=False, setup=None, again=None,
             early=False, chunks=None):
    vm = Sb(A, 'vmcnt', 63); lg = Sb(A, 'lgkmcnt', 15)
    NW = KS * NT * 4
    WB = 512 - NW
    wreg = lambda s_, t: WB + (s_ * NT + t) * 4
    V_L16, V_XB, V_XB2, V_SRC, V_DMA, V_L4, V_OUT, V_OUT2, V_L8, V_SR, V_YB = range(0, 11)
    TMP = 12
    EXT = 20
    XS = 24
    ACC = 48
    ST = ACC + 16 * NT
    assert ST + 16 <= WB, (name, ST, WB)
    BUFB = KS * 1024 + (5120 if ln else 0)
    A(f'{name}:')
    T = TMP
    A(f'''
    v_mbcnt_lo_u32_b32 v{T}, -1, 0
    v_mbcnt_hi_u32_b32 v{T}, -1, v{T}      ; lane
    v_lshlrev_b32 v{V_L16}, 4, v{T}
    v_lshlrev_b32 v{V_L8}, 3, v{T}
    v_lshlrev_b32 v{V_L4}, 2, v{T}
    s_mov_b32 s{S_HI}, 0
    s_mov_b32 s{S_HI+1}, -1
    s_barrier
    ''')
    ldw = wsel(A)
    RB = 64 * NT; RPI = 16 // NT; PPR = 4 * NT
    A(f'''
    v_lshrrev_b32 v{T+1}, {int(math.log2(PPR))}, v{T}
    v_and_b32 v{T+2}, {PPR-1}, v{T}
    s_mov_b32 s{S_T0}, {ldw}
    v_mul_lo_u32 v{T+1}, v{T+1}, s{S_T0}
    v_lshl_add_u32 v{T+1}, v{T+2}, 4, v{T+1}
    s_mul_i32 s{S_T0}, s{S_WAVE}, {RB}
    s_add_u32 s{S_T0}, s{S_T0}, s{S_T2}
    v_add_u32 v{T+1}, s{S_T0}, v{T+1}
    v_lshrrev_b32 v{T+2}, 5, v{T}              ; hf
    v_bfe_u32 v{T+3}, v{T}, 2, 2               ; r
    v_lshl_add_u32 v{T+3}, v{T+2}, 3, v{T+3}
    v_mul_u32_u24 v{T+3}, {RB}, v{T+3}
    v_bfe_u32 v{T+4}, v{T}, 4, 1
    v_lshl_add_u32 v{T+3}, v{T+4}, 5, v{T+3}
    v_and_b32 v{T+4}, 1, v{T}
    v_lshl_add_u32 v{T+3}, v{T+4}, 4, v{T+3}
    v_bfe_u32 v{T+4}, v{T}, 1, 1
    v_lshl_add_u32 v{T+3}, v{T+4}, 3, v{T+3}
    s_mul_i32 s{S_T3}, s{S_WAVE}, 40960
    v_add_u32 v{T+3}, s{S_T3}, v{T+3}
    ''')
    NI = KS * NT
    RING = 40
    dtok = {}; rtok = {}
    def rd(s_):
        vm.wait(dtok[s_ * NT + NT - 1])
        o = ((s_ * NT) % RING) * 1024
        for t in range(NT):
            lg.issue(f'ds_read_b64_tr_b16 {r(wreg(s_,t),2)}, v{T+3} offset:{o+64*t}')
            rtok[s_] = lg.issue(f'ds_read_b64_tr_b16 {r(wreg(s_,t)+2,2)}, v{T+3} offset:{o+64*t+4*RB}')
    nrd = 0
    for i in range(NI):
        if i >= RING:
            sp = (i - RING) // NT
            while nrd <= sp:
                rd(nrd); nrd += 1
            lg.wait(rtok[sp])
        A(f's_add_u32 m0, s{S_T3}, {(i % RING) * 1024}\ns_mov_b32 s{S_T0}, {i * RPI * ldw}')
        dtok[i] = vm.issue(f'buffer_load_dwordx4 v{T+1}, s[8:11], s{S_T0} offen lds')
        while (nrd + 1) * NT <= i - 34:
            rd(nrd); nrd += 1
    while nrd < KS:
        rd(nrd); nrd += 1
    lg.waitall()
    if ln:
        for i in range(4):
            A(f'v_mov_b32 v{XS+i}, 0x3f803f80')
        A('s_nop 1')
        for s_ in range(KS):
            for t in range(NT):
                c = '0' if s_ == 0 else v(ACC + 16 * t, 16)
                A(f'v_mfma_f32_32x32x16_bf16 {v(ACC+16*t,16)}, v[{XS}:{XS+3}], {r(wreg(s_,t),4)}, {c}')
        A('s_nop 15')
        for t in range(NT):
            cs = ACC + 16 * t; e = EXT + 2 * t
            A(f'''
            v_cvt_pk_bf16_f32 v{e}, v{cs}, v{cs}
            v_and_b32 v{T+1}, 0xffff0000, v{e}
            v_sub_f32 v{T+1}, v{cs}, v{T+1}
            v_cvt_pk_bf16_f32 v{e+1}, v{T+1}, 0
            v_cndmask_b32 v{e}, v{e}, 0, s[{S_HI}:{S_HI+1}]
            v_cndmask_b32 v{e+1}, v{e+1}, 0, s[{S_HI}:{S_HI+1}]
            ''')
    KQ = KS // 4
    A(f'''
    v_and_b32 v{T+1}, 31, v{T}                 ; token
    v_lshrrev_b32 v{T+2}, 5, v{T}              ; hf
    ''')
    if shift:
        A(f'''
        s_lshr_b32 s{S_T0}, s{S_WAVE}, 1
        s_add_u32 s{S_T0}, s{S_T0}, 1
        s_sub_u32 s{S_T1}, 0, s{S_T0}
        s_bitcmp1_b32 s{S_WAVE}, 0
        s_cselect_b32 s{S_T0}, s{S_T0}, s{S_T1}
        s_add_u32 s{S_T0}, s{S_T0}, 32
        v_add_u32 v{T+3}, s{S_T0}, v{T+1}
        v_lshrrev_b32 v{T+4}, 5, v{T+3}
        v_mul_u32_u24 v{T+4}, {L.BLK}, v{T+4}
        v_and_b32 v{T+3}, 31, v{T+3}
        v_lshl_add_u32 v{T+3}, v{T+2}, 5, v{T+3}
        v_lshl_add_u32 v{V_DMA}, v{T+3}, 4, v{T+4}
        ''')
    else:
        A(f'v_mov_b32 v{V_DMA}, v{V_L16}')
    A(f'''
    v_mul_u32_u24 v{V_SRC}, 2560, v{T+2}
    v_lshl_add_u32 v{V_SRC}, v{T+1}, 3, v{V_SRC}
    v_add_u32 v{V_SRC}, 40960, v{V_SRC}
    s_mul_i32 s{S_T0}, s{S_WAVE}, {NT*2048}
    v_add_u32 v{V_OUT}, s{S_T0}, v{V_L16}
    v_add_u32 v{V_OUT2}, 1024, v{V_OUT}
    s_mov_b32 s{S_C0}, {fh(-2*0.7978845608028654*math.log2(math.e))}
    s_mov_b32 s{S_C1}, {fh(-2*0.7978845608028654*0.044715*math.log2(math.e))}
    s_mov_b32 s{S_C2}, {fh(1/640.)}
    s_mov_b32 s{S_C3}, {fh(1e-5)}
    ''')
    wait_init(A, T + 4)
    stamp(A, 9)
    A(f'{name}_job:')
    g = G(); g.T = T; g.V_OUT = V_OUT; g.V_OUT2 = V_OUT2; g.V_L16 = V_L16
    cfg = setup(A, g)
    srcblk, dstblk, dspec = cfg['srcblk'], cfg['dstblk'], cfg['dspec']
    depadd = cfg.get('depadd', 1)
    dextra = S_DEP2 if cfg.get('dextra') else None
    nres = cfg.get('nres', 0)
    resblk = cfg.get('resblk', [])
    A(f'''
    s_mov_b32 s{S_PRE}, 0
    s_mov_b32 s{S_LASTF}, 0
    s_mov_b32 s{S_PEND}, 0
    s_mov_b32 s{S_BUF}, 0
    s_barrier
    ''')
    def depaddr(sb):
        A(f'''
        s_and_b32 s{S_T1}, s{sb}, s{S_DEPM}
        s_lshl_b32 s{S_T1}, s{S_T1}, 15
        s_add_u32 s{S_T1}, s{S_T1}, s{S_DEP}
        s_add_u32 s{S_NEED}, s{sb}, {depadd}
        s_min_u32 s{S_NEED}, s{S_NEED}, 64
        ''')
        if cfg.get('nodep0'):
            A(f's_cmp_eq_u32 s{S_LAYER}, 0\ns_cselect_b32 s{S_NEED}, 0, s{S_NEED}')
    def dma_ops(sb, sbuf):
        ops = []
        def pre():
            A(f'''
            s_mul_i32 s{S_DS}, s{sb}, {srcblk}
            s_add_u32 s{S_DS}, s{S_DS}, s{S_SRC}
            s_mov_b32 s{S_DL}, s{sbuf}
            ''')
        first = [True]
        def P_():
            if first[0]: pre(); first[0] = False
        if ln:
            def st0():
                P_()
                A(f'''s_mul_i32 s{S_T0}, s{S_WAVE}, 1280
                s_add_u32 s{S_T0}, s{S_T0}, 40960
                s_add_u32 m0, s{S_T0}, s{S_DL}
                s_add_u32 s{S_T0}, s{S_T0}, s{S_DS}''')
                vm.issue(f'buffer_load_dwordx4 v{V_L16}, s[4:7], s{S_T0} offen sc1 lds')
                vm.issue(f'buffer_load_dword v{V_L4}, s[4:7], s{S_T0} offen offset:1024 sc1 lds')
            ops.append(st0)
        for k in range(nres):
            def rs(k=k):
                P_()
                sr = (S_R1, S_R2)[k]
                A(f's_mul_i32 s{S_T0}, s{sb}, {resblk[k]}\ns_add_u32 s{S_T0}, s{S_T0}, s{sr}')
                vm.issue(f'buffer_load_dwordx4 v[{ST+8*k}:{ST+8*k+3}], v{V_L16}, s[4:7], s{S_T0} offen sc1')
                vm.issue(f'buffer_load_dwordx4 v[{ST+8*k+4}:{ST+8*k+7}], v{V_L16}, s[4:7], s{S_T0} offen offset:1024 sc1')
            ops.append(rs)
        for i in range(KQ):
            def fr(i=i):
                P_()
                if i == 0:
                    A(f'''s_mul_i32 s{S_T0}, s{S_WAVE}, {KQ*1024}
                    s_add_u32 s{S_DS}, s{S_DS}, s{S_T0}
                    s_add_u32 s{S_DL}, s{S_DL}, s{S_T0}''')
                if i % 4 == 0:
                    if i:
                        A(f's_add_u32 s{S_DS}, s{S_DS}, 4096\ns_add_u32 s{S_DL}, s{S_DL}, 4096')
                    A(f's_mov_b32 m0, s{S_DL}\ns_nop 0')
                vm.issue(f'buffer_load_dwordx4 v{V_DMA}, s[4:7], s{S_DS} offen offset:{(i%4)*1024} sc1 lds')
            ops.append(fr)
        return ops
    ND = KQ + 2 * nres + (2 if ln else 0)
    NS = 2 * NT + (2 if epi == 'gelu_y' else 0) + (1 if cfg.get('stats') else 0)
    chunks = chunks or [KQ]
    assert chunks[-1] == KQ
    A(f'{name}_loop:')
    lpre, lgo = A.label('G'), A.label('G')
    A(f's_cmp_lg_u32 s{S_PRE}, 0\ns_cbranch_scc1 {lpre}')
    depaddr(S_B)
    vpoll(A, sum(dspec), S_T1, S_NEED, T + 4, dextra)
    stamp(A, 0)
    for op in dma_ops(S_B, S_BUF): op()
    if early:
        A(f's_waitcnt vmcnt({KQ-chunks[0]})\ns_branch {lgo}\n{lpre}:\ns_waitcnt vmcnt({NS})\n{lgo}:')
    else:
        A(f'{lpre}:\ns_waitcnt vmcnt({KQ-chunks[0]})')
    A(f'''
    v_add_u32 v{V_XB}, s{S_BUF}, v{V_L16}
    v_add_u32 v{V_XB2}, 0x10000, v{V_XB}
    v_add_u32 v{V_SR}, s{S_BUF}, v{V_SRC}
    ''')
    if early:
        A(f's_cmp_lt_u32 s{S_B}, {L.SPLIT-1}\ns_cselect_b32 s{S_BSTEP}, s{S_BSTEP}, 1')
    A(f'''
    s_add_u32 s{S_NB}, s{S_B}, s{S_BSTEP}
    s_barrier
    ''')
    lg.reset()
    stamp(A, 1)
    order = [KQ * w + i for i in range(KQ) for w in range(4)]
    xt = {}
    cdone = [1]
    def xread(p):
        if p >= KS: return
        if cdone[0] < len(chunks) and p >= 4 * chunks[cdone[0] - 1]:
            n = KQ - chunks[cdone[0]]
            if early:
                lk = A.label('G')
                A(f's_cmp_lg_u32 s{S_PRE}, 0\ns_cbranch_scc1 {lk}\ns_waitcnt vmcnt({n})\n{lk}:')
            else:
                A(f's_waitcnt vmcnt({n})')
            A('s_barrier')
            cdone[0] += 1
        s_ = order[p]
        base, off = (V_XB, s_ * 1024) if s_ < 64 else (V_XB2, (s_ - 64) * 1024)
        sl = XS + 4 * (p % 6)
        xt[p] = lg.issue(f'ds_read_b128 v[{sl}:{sl+3}], v{base} offset:{off}')
    for p in range(5):
        xread(p)
    if early:
        depaddr(S_NB)
        lk = A.label('G')
        A(f'''
        s_cmp_eq_u32 s{S_NEED}, 0
        s_cbranch_scc1 {lk}
        v_min_u32 v{ST+14}, {4*(sum(dspec)-1)}, v{V_L4}
        v_lshlrev_b32 v{ST+14}, 5, v{ST+14}
        buffer_load_dword v{ST+15}, v{ST+14}, s[4:7], s{S_T1} offen sc1
        {lk}:
        ''')
    if nres:
        for j in range(8):
            A(f'v_lshlrev_b32 v{ACC+2*j}, 16, v{ST+j}\nv_and_b32 v{ACC+2*j+1}, 0xffff0000, v{ST+j}')
        if nres == 2:
            for j in range(8):
                A(f'v_lshlrev_b32 v{T+2}, 16, v{ST+8+j}\nv_and_b32 v{T+3}, 0xffff0000, v{ST+8+j}')
                A(f'v_pk_add_f32 v[{ACC+2*j}:{ACC+2*j+1}], v[{ACC+2*j}:{ACC+2*j+1}], v[{T+2}:{T+3}]')
        A('s_nop 1')
    side = []
    MEAN, RSTD, SCL, VAR = T + 0, T + 1, T + 2, T + 3
    SA = T + 4
    AX = ST + 8
    RB_ = ST + 16
    st = {}
    def tx(t, wait=None, p=0):
        def f():
            if wait is not None: lg.wait(st[wait])
            A(t)
        side.append((p, f))
    def rdl(key, t, p=0):
        def f(): st[key] = lg.issue(t)
        side.append((p, f))
    if ln:
        for h in range(3):
            ids = list(range(4 * h, min(4 * h + 4, 10)))
            for i in ids:
                rdl(i, f'ds_read_b64 v[{ST+2*(i%4)}:{ST+2*(i%4)+1}], v{V_SR} offset:{256*i}')
            for i in ids:
                q = ST + 2 * (i % 4)
                if i < 2:
                    tx(f'v_mov_b32 v{SA+2*i}, v{q}', i); tx(f'v_mov_b32 v{SA+2*i+1}, v{q+1}')
                else:
                    d = SA + 2 * (i & 1)
                    tx(f'v_add_f32 v{d}, v{d}, v{q}', i); tx(f'v_add_f32 v{d+1}, v{d+1}, v{q+1}')
        for t_ in f'''v_add_f32 v{SA}, v{SA}, v{SA+2}
        v_add_f32 v{SA+1}, v{SA+1}, v{SA+3}
        v_mov_b32 v{SA+2}, v{SA}
        v_mov_b32 v{SA+3}, v{SA+1}
        s_nop 1
        v_permlane32_swap_b32 v{SA}, v{SA+2}
        v_permlane32_swap_b32 v{SA+1}, v{SA+3}
        v_add_f32 v{SA}, v{SA}, v{SA+2}
        v_add_f32 v{SA+1}, v{SA+1}, v{SA+3}
        v_mul_f32 v{MEAN}, s{S_C2}, v{SA}
        v_mul_f32 v{VAR}, s{S_C2}, v{SA+1}
        v_sub_f32 v{SA}, 0, v{MEAN}
        v_cvt_pk_bf16_f32 v{AX+1}, v{SA}, v{SA}
        v_fma_f32 v{VAR}, -v{MEAN}, v{MEAN}, v{VAR}
        v_and_b32 v{SA+1}, 0xffff0000, v{AX+1}
        v_max_f32 v{VAR}, 0, v{VAR}
        v_sub_f32 v{SA}, v{SA}, v{SA+1}
        v_add_f32 v{SA+2}, s{S_C3}, v{VAR}
        v_cvt_pk_bf16_f32 v{AX}, v{SA+1}, v{SA}
        v_rsq_f32 v{RSTD}, v{SA+2}
        s_nop 0'''.split('\n'):
            tx(t_.strip())
        if ln == 2:
            for t_ in f'''v_mul_f32 v{SA}, v{RSTD}, v{RSTD}
            v_fma_f32 v{SA}, v{SA}, v{VAR}, s{S_C3}
            v_rsq_f32 v{SA}, v{SA}
            s_nop 0
            v_mul_f32 v{SCL}, v{SA}, v{RSTD}'''.split('\n'):
                tx(t_.strip())
        else:
            SCL = RSTD
        if form == 'N':
            assert RB_ + 16 <= WB
            for t_ in f'''v_cvt_pk_bf16_f32 v{SA}, v{RSTD}, v{RSTD}
            v_and_b32 v{SA}, 0xffff0000, v{SA}
            v_sub_f32 v{SA+1}, v{RSTD}, v{SA}
            v_cvt_pk_bf16_f32 v{ST+10}, v{SA}, v{SA+1}
            v_and_b32 v{SA}, 0xffff0000, v{ST+10}
            v_sub_f32 v{SA+1}, v{SA+1}, v{SA}
            v_cvt_pk_bf16_f32 v{ST+11}, v{SA+1}, 0
            v_mov_b32 v{SA}, 0x3f803f80
            v_cndmask_b32 v{ST+12}, v{SA}, 0, s[{S_HI}:{S_HI+1}]
            v_cndmask_b32 v{ST+13}, v{SA}, 0, s[{S_HI}:{S_HI+1}]
            s_nop 1
            v_mfma_f32_32x32x8_bf16 v[{RB_}:{RB_+15}], v[{ST+10}:{ST+11}], v[{ST+12}:{ST+13}], 0'''.split('\n'):
                tx(t_.strip())
        if epi == 'gelu_y':
            plast = (4 * chunks[-2] - 4) if len(chunks) > 1 else 0
            tx(f's_lshl_b32 s{S_T0}, s{S_IDX}, 13\ns_add_u32 s{S_T0}, s{S_T0}, s{S_BUF}\nv_add_u32 v{V_YB}, s{S_T0}, v{V_OUT}')
            rdl('y0', f'ds_read_b128 v[{ST}:{ST+3}], v{V_YB}', plast)
            rdl('y1', f'ds_read_b128 v[{ST+4}:{ST+7}], v{V_YB} offset:1024')
            tx(f'v_mul_f32 v{SA}, v{MEAN}, v{RSTD}')
            for j in range(8):
                tx(f'v_lshlrev_b32 v{SA+1}, 16, v{ST+j}', {0: 'y0', 4: 'y1'}.get(j))
                tx(f'v_and_b32 v{SA+2}, 0xffff0000, v{ST+j}')
                tx(f'v_fma_f32 v{SA+1}, v{SA+1}, v{RSTD}, -v{SA}')
                tx(f'v_fma_f32 v{SA+2}, v{SA+2}, v{RSTD}, -v{SA}')
                tx(f'v_cvt_pk_bf16_f32 v{ST+j}, v{SA+1}, v{SA+2}')
            tx(f's_mul_i32 s{S_T1}, s{S_B}, {L.BLK}\ns_add_u32 s{S_T1}, s{S_T1}, s{S_DST2}')
            tx(f'buffer_store_dwordx4 v[{ST}:{ST+3}], v{V_OUT}, s[4:7], s{S_T1} offen sc1')
            tx(f'buffer_store_dwordx4 v[{ST+4}:{ST+7}], v{V_OUT}, s[4:7], s{S_T1} offen offset:1024 sc1')
    per = 4 if NT == 1 else 2
    ck = cfg.get('ck', 24)
    edma = []
    for p in range(KS):
        if early and p == ck:
            assert cdone[0] == len(chunks)
            lk = A.label('G')
            A(f'''
            s_waitcnt vmcnt(0)
            v_cmp_gt_u32 vcc, s{S_NEED}, v{ST+15}
            s_cmp_eq_u64 vcc, 0
            s_cselect_b32 s{S_PRE}, 1, 0
            s_cmp_lt_u32 s{S_NB}, s{S_END}
            s_cselect_b32 s{S_PRE}, s{S_PRE}, 0
            s_cmp_lg_u32 s{S_PRE}, 0
            s_cselect_b32 s{S_T2}, s{S_NB}, s{S_B}
            s_sub_u32 s{S_T3}, {BUFB}, s{S_BUF}
            s_cmp_eq_u32 s{S_PEND}, 0
            s_cbranch_scc1 {lk}
            ''')
            put_flag(A, SA + 3, V_L16, S_PEND)
            A(f's_mov_b32 s{S_PEND}, 0\n{lk}:')
            edma = dma_ops(S_T2, S_T3)
        lg.wait(xt[p])
        s_ = order[p]
        sl = XS + 4 * (p % 6)
        for t in range(NT):
            c = '0' if (p == 0 and not nres) else v(ACC + 16 * t, 16)
            if form == 'T':
                A(f'v_mfma_f32_32x32x16_bf16 {v(ACC+16*t,16)}, {r(wreg(s_,t),4)}, v[{sl}:{sl+3}], {c}')
            else:
                A(f'v_mfma_f32_32x32x16_bf16 {v(ACC+16*t,16)}, v[{sl}:{sl+3}], {r(wreg(s_,t),4)}, {c}')
            if t == 0:
                xread(p + 5)
            elif edma:
                edma.pop(0)()
            for _ in range(per):
                if side and side[0][0] <= p: side.pop(0)[1]()
        if early and p == ck - 1:
            assert not side, len(side)
    while side:
        side.pop(0)[1]()
    assert not edma
    lg.waitall()
    if ln:
        for t in range(NT):
            a_, b_ = f'v[{EXT+2*t}:{EXT+2*t+1}]', f'v[{AX}:{AX+1}]'
            if form == 'N': a_, b_ = b_, a_
            A(f'v_mfma_f32_32x32x8_bf16 {v(ACC+16*t,16)}, {a_}, {b_}, {v(ACC+16*t,16)}')
    if not dbuf:
        A('s_barrier')
    stamp(A, 2)
    if not early:
        depaddr(S_NB)
        nw = sload(A, dspec, S_T1, dextra)
    A(f's_mul_i32 s{S_T0}, s{S_B}, s{S_DST2}' if cfg.get('dyndst') else f's_mul_i32 s{S_T0}, s{S_B}, {dstblk}')
    A(f's_add_u32 s{S_T2}, s{S_T0}, s{S_STD}\ns_add_u32 s{S_T0}, s{S_T0}, s{S_DST}')
    A('s_nop 10')
    osrd = 's[8:11]' if cfg.get('dyndst') else 's[4:7]'
    for t in range(NT):
        a0 = ACC + 16 * t
        if ln and form == 'T' and not epi.startswith('gelu'):
            for i in range(16):
                A(f'v_mul_f32 v{a0+i}, v{a0+i}, v{SCL}')
        elif ln and form == 'N':
            for i in range(0, 16, 2):
                A(f'v_pk_mul_f32 v[{a0+i}:{a0+i+1}], v[{a0+i}:{a0+i+1}], v[{RB_+i}:{RB_+i+1}]')
        if epi.startswith('gelu'):
            G0 = XS
            A(f'v_mov_b32 v{G0+16}, s{S_C0}')
            for h in range(2):
                xs = [a0 + 8 * h + i for i in range(8)]
                for i, x in enumerate(xs): A(f'v_mul_f32 v{x}, v{x}, v{SCL}')
                for i, x in enumerate(xs): A(f'v_mul_f32 v{G0+i}, v{x}, v{x}')
                for i, x in enumerate(xs): A(f'v_fma_f32 v{G0+i}, v{G0+i}, s{S_C1}, v{G0+16}')
                for i, x in enumerate(xs): A(f'v_mul_f32 v{G0+i}, v{G0+i}, v{x}')
                for i, x in enumerate(xs): A(f'v_exp_f32 v{G0+i}, v{G0+i}')
                for i, x in enumerate(xs): A(f'v_add_f32 v{G0+i}, 1.0, v{G0+i}')
                for i, x in enumerate(xs): A(f'v_rcp_f32 v{G0+i}, v{G0+i}')
                for i, x in enumerate(xs): A(f'v_mul_f32 v{x}, v{x}, v{G0+i}')
                for j in range(4):
                    A(f'v_cvt_pk_bf16_f32 v{G0+8+4*h+j}, v{xs[2*j]}, v{xs[2*j+1]}')
                A(f'buffer_store_dwordx4 v[{G0+8+4*h}:{G0+8+4*h+3}], v{(V_OUT,V_OUT2)[h]}, {osrd}, s{S_T0} offen sc1')
        else:
            P0 = XS + 8 * t
            for j in range(8):
                A(f'v_cvt_pk_bf16_f32 v{P0+j}, v{a0+2*j}, v{a0+2*j+1}')
                if j == 3:
                    A(f'buffer_store_dwordx4 v[{P0}:{P0+3}], v{V_OUT}, {osrd}, s{S_T0} offen offset:{2048*t} sc1')
            A(f'buffer_store_dwordx4 v[{P0+4}:{P0+7}], v{V_OUT2}, {osrd}, s{S_T0} offen offset:{2048*t} sc1')
    if cfg.get('stats'):
        lk = A.label('G')
        if cfg['stats'] == 'l0':
            A(f's_cmp_lg_u32 s{S_LAYER}, 0\ns_cbranch_scc1 {lk}')
        emit_stats(A, ACC, XS + 16, V_L8, S_T2)
        A(f'{lk}:')
    stamp(A, 3)
    A(f's_add_u32 s{S_T2}, s{S_B}, 1')
    if dbuf:
        A(f's_sub_u32 s{S_BUF}, {BUFB}, s{S_BUF}')
    l1, l2 = A.label('G'), A.label('G')
    if early:
        A(f'''
        s_mov_b32 s{S_PEND}, s{S_T2}
        s_cmp_lg_u32 s{S_PRE}, 0
        s_cbranch_scc1 {l2}
        s_mov_b32 s{S_PEND}, 0
        s_waitcnt vmcnt(0)
        ''')
        put_flag(A, T, V_L16, S_T2)
        A(f'{l2}:')
    else:
        A('s_waitcnt lgkmcnt(0)')
        smin(A, nw)
        A(f'''
        s_mov_b32 s{S_PRE}, 0
        s_cmp_lt_u32 s{S_PD}, s{S_NEED}
        s_cbranch_scc1 {l1}
        s_cmp_ge_u32 s{S_NB}, 64
        s_cbranch_scc1 {l1}
        s_mov_b32 s{S_PRE}, 1
        ''')
        for op in dma_ops(S_NB, S_BUF): op()
        A(f's_waitcnt vmcnt({ND})\ns_branch {l2}\n{l1}:\ns_waitcnt vmcnt(0)\n{l2}:')
        put_flag(A, T, V_L16, S_T2)
    stamp(A, 4)
    A(f'''
    s_mov_b32 s{S_B}, s{S_NB}
    s_cmp_lt_u32 s{S_B}, s{S_END}
    s_cbranch_scc1 {name}_loop
    ''')
    if again:
        again(A, f'{name}_job')
    A('s_branch L_next')

def wsel_simple(karg, nbytes, ldw, off_code):
    def f(A):
        A(f'''
        s_load_dwordx2 s[8:9], s[0:1], {karg}
        s_mov_b32 s10, {nbytes}
        s_mov_b32 s11, 0x20000
        ''')
        A(off_code)
        A('s_waitcnt lgkmcnt(0)')
        return ldw
    return f

def common(A, src, dst, dep, flagname, dstextra=0, bstep=1, depmul=20):
    lay(A, S_SRC, src); lay(A, S_DST, dst, dstextra)
    lay(A, S_DEP, lambda l: L.flag(dep, l)); lay(A, S_FLAG, lambda l: L.flag(flagname, l))
    A(f'''
    s_lshl_b32 s{S_T0}, s{S_IDX}, 2
    s_add_u32 s{S_T0}, s{S_T0}, s{S_WAVE}      ; tile
    s_lshl_b32 s{S_T1}, s{S_T0}, 7
    s_add_u32 s{S_FLAG}, s{S_FLAG}, s{S_T1}
    s_add_u32 s{S_DEP2}, s{S_DEP}, s{S_T1}
    s_lshl_b32 s{S_T1}, s{S_T0}, 8
    s_add_u32 s{S_STD}, s{S_DST}, s{S_T1}
    s_add_u32 s{S_STD}, s{S_STD}, 40960
    s_lshl_b32 s{S_T2}, s{S_T0}, 11
    s_mul_i32 s{S_T1}, s{S_WAVE}, {depmul}
    s_and_b32 s{S_T1}, s{S_T1}, -4
    s_lshl_b32 s{S_T1}, s{S_T1}, 5
    s_add_u32 s{S_DEP}, s{S_DEP}, s{S_T1}
    s_mov_b32 s{S_DEPM}, 0
    s_mov_b32 s{S_B}, 0
    s_mov_b32 s{S_BSTEP}, {bstep}
    s_mov_b32 s{S_END}, 64
    s_lshl_b32 s{S_T3}, s{S_IDX}, 13
    ''')

def gen_all_gemms(A):
    def wsel_qk(A):
        A(f'''
        s_load_dwordx2 s[8:9], s[0:1], 16
        s_load_dwordx2 s[48:49], s[0:1], 24
        s_mov_b32 s10, 5242880
        s_mov_b32 s11, 0x20000
        s_and_b32 s{S_T2}, s{S_IDX}, 15
        s_lshl_b32 s{S_T2}, s{S_T2}, 9
        s_waitcnt lgkmcnt(0)
        s_cmp_lt_u32 s{S_IDX}, 16
        s_cselect_b32 s8, s8, s48
        s_cselect_b32 s9, s9, s49
        ''')
        return 8192
    def setup_qkv(A, g):
        lay(A, S_SRC, L.X); lay(A, S_DST, L.Q); lay(A, S_FLAG, lambda l: L.flag('QKV', l))
        A(f'''
        s_lshr_b32 s{S_T0}, s{S_IDX}, 4
        s_lshl_b32 s{S_T1}, s{S_T0}, 24
        s_add_u32 s{S_DST}, s{S_DST}, s{S_T1}
        s_sub_u32 s{S_T1}, s{S_T0}, 1
        s_cmp_eq_u32 s{S_T0}, 0
        s_cselect_b32 s{S_T1}, 2, s{S_T1}
        s_lshl_b32 s{S_T1}, s{S_T1}, 8
        s_add_u32 s{S_FLAG}, s{S_FLAG}, s{S_T1}
        s_and_b32 s{S_T0}, s{S_IDX}, 15
        s_lshl_b32 s{S_T1}, s{S_T0}, 14
        s_add_u32 s{S_DST}, s{S_DST}, s{S_T1}
        s_lshl_b32 s{S_T1}, s{S_T0}, 11
        s_add_u32 s{S_FLAG}, s{S_FLAG}, s{S_T1}
        s_lshr_b32 s{S_T1}, s{S_WAVE}, 1
        s_lshl_b32 s{S_T1}, s{S_T1}, 10
        s_add_u32 s{S_FLAG}, s{S_FLAG}, s{S_T1}
        s_and_b32 s{S_T1}, s{S_WAVE}, 1
        s_lshl_b32 s{S_T1}, s{S_T1}, 7
        s_add_u32 s{S_FLAG}, s{S_FLAG}, s{S_T1}
        s_lshl_b32 s{S_T0}, s{S_GRP}, 15
        s_add_u32 s{S_FLAG}, s{S_FLAG}, s{S_T0}
        s_mul_i32 s{S_DEP}, s{S_WAVE}, 640
        s_add_u32 s{S_DEP}, s{S_DEP}, {L.flag('M4', 0)}
        s_mov_b32 s{S_DEPM}, 1
        s_mov_b32 s{S_B}, s{S_GRP}
        s_sub_u32 s{S_BSTEP}, 2, s{S_LAYER}
        s_mov_b32 s{S_STD}, 0
        s_or_b32 s{S_T0}, s{S_GRP}, s{S_LAYER}
        s_cselect_b32 s{S_END}, 64, {L.SPLIT}
        ''')
        return dict(srcblk=L.SBLK, dstblk=262144, dspec=[4, 1], nodep0=True, ck=26)
    def again_qkv(A, lab):
        l = A.label('G')
        A(f'''
        s_or_b32 s{S_T0}, s{S_GRP}, s{S_LAYER}
        s_cbranch_scc1 {l}
        s_mov_b32 s{S_LAYER}, 1
        s_branch {lab}
        {l}:
        ''')
    C40 = [4, 7, 10]
    gen_gemm(A, 'RQK', 40, 2, 'T', 1, 'store', wsel_qk, setup=setup_qkv, again=again_qkv, early=True, chunks=[4, 10])
    gen_gemm(A, 'RV', 40, 2, 'N', 1, 'store',
             wsel_simple(32, 5242880, 8192, f's_and_b32 s{S_T2}, s{S_IDX}, 15\ns_lshl_b32 s{S_T2}, s{S_T2}, 9'),
             setup=setup_qkv, again=again_qkv, early=True, chunks=[4, 10])
    def setup_o(A, g):
        common(A, L.O, L.OP, 'AT', 'O', depmul=8)
        lay(A, S_FLAG, lambda l: L.flag('O', l))
        A(f'''
        s_and_b32 s{S_T0}, s{S_IDX}, 3
        s_lshl_b32 s{S_T1}, s{S_T0}, 16
        s_add_u32 s{S_SRC}, s{S_SRC}, s{S_T1}
        s_mul_i32 s{S_T1}, s{S_T0}, {L.OPK}
        s_add_u32 s{S_DST}, s{S_DST}, s{S_T1}
        s_lshl_b32 s{S_T1}, s{S_T0}, 10
        s_add_u32 s{S_DEP}, s{S_DEP}, s{S_T1}
        s_lshl_b32 s{S_T1}, s{S_T0}, 7
        s_add_u32 s{S_FLAG}, s{S_FLAG}, s{S_T1}
        s_lshr_b32 s{S_T0}, s{S_IDX}, 2
        s_lshl_b32 s{S_T1}, s{S_T0}, 13
        s_add_u32 s{S_DST}, s{S_DST}, s{S_T1}
        s_lshl_b32 s{S_T1}, s{S_T0}, 11
        s_add_u32 s{S_FLAG}, s{S_FLAG}, s{S_T1}
        s_lshl_b32 s{S_T1}, s{S_WAVE}, 9
        s_add_u32 s{S_FLAG}, s{S_FLAG}, s{S_T1}
        ''')
        return dict(srcblk=262144, dstblk=L.BLK, dspec=[2])
    gen_gemm(A, 'RO', 64, 1, 'T', 0, 'store',
             wsel_simple(40, 5242880, 1280, f'''s_and_b32 s{S_T2}, s{S_IDX}, 3
             s_mul_i32 s{S_T2}, s{S_T2}, {1024*1280}
             s_lshr_b32 s{S_T0}, s{S_IDX}, 2
             s_lshl_b32 s{S_T0}, s{S_T0}, 8
             s_add_u32 s{S_T2}, s{S_T2}, s{S_T0}'''), setup=setup_o, chunks=[4, 8, 12, 16])
    offj = f's_lshl_b32 s{S_T2}, s{S_IDX}, 8'
    def setup_m1(A, g):
        common(A, L.X1, L.H, 'RL', 'M1', dstextra=L.BLK)
        lay(A, S_DST2, L.Y)
        A(f's_add_u32 s{S_DST}, s{S_DST}, s{S_T3}\ns_add_u32 s{S_DST2}, s{S_DST2}, s{S_T3}')
        return dict(srcblk=L.SBLK, dstblk=L.BLK, dspec=[4, 1])
    gen_gemm(A, 'RM1', 40, 1, 'T', 2, 'gelu_y', wsel_simple(64, 819200, 1280, offj), setup=setup_m1, chunks=C40)
    def setup_m2(A, g):
        common(A, L.H, L.X1P, 'M1', 'M2')
        lay(A, S_R1, L.Y)
        A(f's_add_u32 s{S_DST}, s{S_DST}, s{S_T3}\ns_add_u32 s{S_R1}, s{S_R1}, s{S_T2}')
        return dict(srcblk=L.BLK, dstblk=L.SBLK, dspec=[4, 1], dextra=True, depadd=2, nres=1, resblk=[L.BLK], stats=True)
    gen_gemm(A, 'RM2', 40, 1, 'T', 0, 'store', wsel_simple(72, 819200, 1280, offj), shift=True, setup=setup_m2, chunks=C40)
    def setup_m3(A, g):
        common(A, L.X1P, L.H2, 'M2', 'M3')
        A(f's_add_u32 s{S_DST}, s{S_DST}, s{S_T3}')
        return dict(srcblk=L.SBLK, dstblk=L.H2BLK, dspec=[4, 1])
    gen_gemm(A, 'RM3', 40, 1, 'T', 1, 'gelu', wsel_simple(80, 640 * 3456, 3456, offj), setup=setup_m3, chunks=C40)
    def setup_m4(A, g):
        common(A, L.H2, lambda l: L.X(1), 'M3', 'M4', bstep=2, depmul=54)
        lay(A, S_R1, L.X1P); lay(A, S_R2, L.X1)
        l0, l1 = A.label('G'), A.label('G')
        T = g.T
        A(f'''
        s_add_u32 s{S_R1}, s{S_R1}, s{S_T2}
        s_add_u32 s{S_R2}, s{S_R2}, s{S_T2}
        s_mov_b32 s{S_B}, s{S_GRP}
        s_lshl_b32 s{S_T0}, s{S_GRP}, 15
        s_add_u32 s{S_FLAG}, s{S_FLAG}, s{S_T0}
        s_cmp_eq_u32 s{S_LAYER}, 0
        s_cbranch_scc0 {l0}
        s_mov_b32 s{S_DST2}, {L.SBLK}
        s_add_u32 s{S_DST}, s{S_DST}, s{S_T3}
        s_mov_b32 s8, s4
        s_mov_b32 s9, s5
        s_mov_b32 s10, {L.WS_BYTES}
        s_branch {l1}
        {l0}:
        s_load_dwordx2 s[8:9], s[0:1], 96
        s_mov_b32 s10, {2048*1280}
        s_mov_b32 s{S_DST2}, {L.BLK}
        s_lshl_b32 s{S_DST}, s{S_IDX}, 8
        v_mul_u32_u24 v{g.V_OUT}, 1280, v{T+1}
        v_lshl_add_u32 v{g.V_OUT}, v{T+2}, 4, v{g.V_OUT}
        s_lshl_b32 s{S_T0}, s{S_WAVE}, 6
        v_add_u32 v{g.V_OUT}, s{S_T0}, v{g.V_OUT}
        v_add_u32 v{g.V_OUT2}, 32, v{g.V_OUT}
        s_waitcnt lgkmcnt(0)
        {l1}:
        ''')
        return dict(srcblk=L.H2BLK, dstblk=L.BLK, dspec=[14], nres=2, resblk=[L.SBLK, L.SBLK], dyndst=True, stats='l0')
    gen_gemm(A, 'RM4', 108, 1, 'T', 0, 'store', wsel_simple(88, 1728 * 1280, 1280, offj), dbuf=False, setup=setup_m4,
             chunks=[4, 8, 12, 17, 22, 27])

def gen_rl(A):
    V_L16, V_L8, V_FL, T = 0, 1, 2, 4
    B0 = 16
    AC = 64
    A(f'''
    RRL:
    v_mbcnt_lo_u32_b32 v{T}, -1, 0
    v_mbcnt_hi_u32_b32 v{T}, -1, v{T}
    v_lshlrev_b32 v{V_L16}, 4, v{T}
    v_lshlrev_b32 v{V_L8}, 3, v{T}
    v_mov_b32 v{V_FL}, 0
    ''')
    wait_init(A, T + 4)
    lay(A, S_SRC, L.OP); lay(A, S_R1, L.X); lay(A, S_DST, L.X1)
    lay(A, S_DEP, lambda l: L.flag('O', l)); lay(A, S_FLAG, lambda l: L.flag('RL', l))
    A(f'''
    s_lshl_b32 s{S_T0}, s{S_IDX}, 2
    s_add_u32 s{S_T0}, s{S_T0}, s{S_WAVE}        ; tile
    s_lshl_b32 s{S_T1}, s{S_T0}, 9
    s_add_u32 s{S_DEP}, s{S_DEP}, s{S_T1}
    s_lshl_b32 s{S_T1}, s{S_T0}, 7
    s_add_u32 s{S_FLAG}, s{S_FLAG}, s{S_T1}
    s_lshl_b32 s{S_T1}, s{S_T0}, 8
    s_add_u32 s{S_T1}, s{S_T1}, 40960
    v_add_u32 v{V_L8}, s{S_T1}, v{V_L8}
    s_lshl_b32 s{S_T1}, s{S_T0}, 11
    v_add_u32 v{V_L16}, s{S_T1}, v{V_L16}
    s_mov_b32 s{S_B}, 0
    s_mov_b32 s{S_LASTF}, 0
    RRL_loop:
    s_add_u32 s{S_NEED}, s{S_B}, 1
    ''')
    vpoll(A, 4, S_DEP, S_NEED, T + 4)
    stamp(A, 0)
    A(f's_mov_b32 s{S_T0}, s{S_SRC}')
    for k in range(5):
        so = S_T0 if k < 4 else S_R1
        A(f'buffer_load_dwordx4 v[{B0+8*k}:{B0+8*k+3}], v{V_L16}, s[4:7], s{so} offen sc1')
        A(f'buffer_load_dwordx4 v[{B0+8*k+4}:{B0+8*k+7}], v{V_L16}, s[4:7], s{so} offen offset:1024 sc1')
        if k < 3:
            A(f's_add_u32 s{S_T0}, s{S_T0}, {L.OPK}')
    for k in range(5):
        A(f's_waitcnt vmcnt({8-2*k})')
        for j in range(8):
            x = B0 + 8 * k + j
            if k == 0:
                A(f'v_lshlrev_b32 v{AC+2*j}, 16, v{x}\nv_and_b32 v{AC+2*j+1}, 0xffff0000, v{x}')
            else:
                t = T + 2 * (j & 1)
                A(f'v_lshlrev_b32 v{t}, 16, v{x}\nv_and_b32 v{t+1}, 0xffff0000, v{x}')
                A(f'v_pk_add_f32 v[{AC+2*j}:{AC+2*j+1}], v[{AC+2*j}:{AC+2*j+1}], v[{t}:{t+1}]')
    for j in range(8):
        A(f'v_cvt_pk_bf16_f32 v{B0+j}, v{AC+2*j}, v{AC+2*j+1}')
    A(f'''
    buffer_store_dwordx4 v[{B0}:{B0+3}], v{V_L16}, s[4:7], s{S_DST} offen sc1
    buffer_store_dwordx4 v[{B0+4}:{B0+7}], v{V_L16}, s[4:7], s{S_DST} offen offset:1024 sc1
    ''')
    emit_stats(A, AC, T, V_L8, S_DST)
    stamp(A, 1)
    A('s_waitcnt vmcnt(0)')
    put_flag(A, T, V_FL, S_NEED)
    stamp(A, 2)
    A(f'''
    s_add_u32 s{S_SRC}, s{S_SRC}, {L.BLK}
    s_add_u32 s{S_R1}, s{S_R1}, {L.SBLK}
    s_add_u32 s{S_DST}, s{S_DST}, {L.SBLK}
    s_add_u32 s{S_B}, s{S_B}, 1
    s_cmp_lt_u32 s{S_B}, 64
    s_cbranch_scc1 RRL_loop
    s_branch L_next
    ''')

def gen_at(A):
    V_L16, T = 0, 4
    BIAS, SX, OA, PK, SM = 16, 32, 64, 128, 160
    QF = [256, 288]; KF, VF, KMF, VMF = 320, 352, 384, 392
    MXC, LX, M0, M1, AL = T, T + 1, T + 2, T + 3, T + 4
    S_H, S_Q, S_KM, S_RF = S_R1, S_SRC, S_R2, S_DST2
    SL = 56
    A(f'''
    RAT:
    v_mbcnt_lo_u32_b32 v{T}, -1, 0
    v_mbcnt_hi_u32_b32 v{T}, -1, v{T}
    v_lshlrev_b32 v{V_L16}, 4, v{T}
    s_lshl_b32 s{S_H}, s{S_IDX}, 2
    s_add_u32 s{S_H}, s{S_H}, s{S_WAVE}
    v_and_b32 v{T+1}, 31, v{T}
    v_lshrrev_b32 v{T+2}, 5, v{T}
    v_lshlrev_b32 v{T+3}, 2, v{T+2}
    v_sub_u32 v{T+3}, v{T+1}, v{T+3}
    v_mov_b32 v{T+4}, {fh(-1e30)}
    ''')
    for rr in range(16):
        key = 8 * (rr >> 2) + (rr & 3)
        A(f'v_cmp_gt_i32 vcc, {key}, v{T+3}\ns_nop 1\nv_cndmask_b32 v{BIAS+rr}, 0, v{T+4}, vcc')
    wait_init(A, T + 8)
    lay(A, S_Q, L.Q); lay(A, S_KM, L.KM); lay(A, S_DST, L.O)
    lay(A, S_DEP, lambda l: L.flag('QKV', l)); lay(A, S_RF, lambda l: L.flag('R', l)); lay(A, S_FLAG, lambda l: L.flag('AT', l))
    A(f'''
    s_lshl_b32 s{S_T0}, s{S_H}, 13
    s_add_u32 s{S_Q}, s{S_Q}, s{S_T0}
    s_add_u32 s{S_DST}, s{S_DST}, s{S_T0}
    s_lshl_b32 s{S_T0}, s{S_H}, 12
    s_add_u32 s{S_KM}, s{S_KM}, s{S_T0}
    s_lshl_b32 s{S_T0}, s{S_H}, 7
    s_add_u32 s{S_RF}, s{S_RF}, s{S_T0}
    s_add_u32 s{S_FLAG}, s{S_FLAG}, s{S_T0}
    s_lshl_b32 s{S_T0}, s{S_H}, 10
    s_add_u32 s{S_DEP}, s{S_DEP}, s{S_T0}
    s_sub_u32 s{S_DEPM}, 1, s{S_LAYER}
    s_lshl_b32 s{S_DEPM}, s{S_DEPM}, 15
    s_mov_b32 s{S_C0}, {fh(128 ** -0.5 * math.log2(math.e))}
    s_mov_b32 s{S_B}, 0
    s_mov_b32 s{S_NEED}, 1
    s_mov_b32 s{S_LASTF}, 0
    s_mov_b32 s{S_PRE}, 0
    ''')
    vm = Sb(A, 'vmcnt', 63)
    def loadlist(qf, sq):
        for m in range(3):
            A(f's_add_u32 s{SL+2*m}, s{sq}, {16*L.MB*m}\ns_add_u32 s{SL+2*m+1}, s{sq}, {16*L.MB*m+4096}')
        out = []
        for s_ in range(8):
            out.append(f'buffer_load_dwordx4 {r(qf+4*s_,4)}, v{V_L16}, s[4:7], s{SL+s_//4} offen offset:{(s_%4)*1024} sc1')
            out.append(f'buffer_load_dwordx4 {r(KF+4*s_,4)}, v{V_L16}, s[4:7], s{SL+2+s_//4} offen offset:{(s_%4)*1024} sc1')
        for s_ in range(8):
            out.append(f'buffer_load_dwordx4 {r(VF+4*s_,4)}, v{V_L16}, s[4:7], s{SL+4+s_//4} offen offset:{(s_%4)*1024} sc1')
        return out
    def xh(op, a, b):
        A(f'v_mov_b32 v{b}, v{a}\ns_nop 1\nv_permlane32_swap_b32 v{a}, v{b}\n{op} v{a}, v{a}, v{b}')
    def pre(qf, nlate=0):
        for s_ in range(8):
            c = v(BIAS, 16) if s_ == 0 else v(SX, 16)
            A(f'v_mfma_f32_32x32x16_bf16 {v(SX,16)}, {r(KF+4*s_,4)}, {r(qf+4*s_,4)}, {c}')
        A(f'v_mov_b32 v{T+6}, s{S_C0}\nv_mov_b32 v{T+7}, s{S_C0}\ns_nop 9')
        A(f'v_max3_f32 v{M0}, v{SX}, v{SX+1}, v{SX+2}\nv_max3_f32 v{M1}, v{SX+3}, v{SX+4}, v{SX+5}')
        for i in range(6, 16, 4):
            A(f'v_max3_f32 v{M0}, v{M0}, v{SX+i}, v{SX+i+1}')
            if i + 3 < 16:
                A(f'v_max3_f32 v{M1}, v{M1}, v{SX+i+2}, v{SX+i+3}')
        A(f'v_max_f32 v{M0}, v{M0}, v{M1}')
        xh('v_max_f32', M0, M1)
        A(f'v_mul_f32 v{MXC}, s{S_C0}, v{M0}\nv_sub_f32 v{M0}, 0, v{MXC}\nv_sub_f32 v{M1}, 0, v{MXC}')
        for i in range(0, 16, 2):
            A(f'v_pk_fma_f32 v[{SX+i}:{SX+i+1}], v[{SX+i}:{SX+i+1}], v[{T+6}:{T+7}], v[{M0}:{M1}]')
        for i in range(16): A(f'v_exp_f32 v{SX+i}, v{SX+i}')
        A(f'v_pk_add_f32 v[{M0}:{M1}], v[{SX}:{SX+1}], v[{SX+2}:{SX+3}]')
        for i in range(4, 16, 2):
            A(f'v_pk_add_f32 v[{M0}:{M1}], v[{M0}:{M1}], v[{SX+i}:{SX+i+1}]')
        A(f'v_add_f32 v{LX}, v{M0}, v{M1}')
        for j in range(8): A(f'v_cvt_pk_bf16_f32 v{SX+j}, v{SX+2*j}, v{SX+2*j+1}')
        lk = A.label('G')
        lk2 = A.label('G')
        A(f's_cmp_eq_u32 s{S_PRE}, 0\ns_cbranch_scc1 {lk}\ns_waitcnt vmcnt({nlate})')
        put_flag(A, M0, V_L16, S_B)
        A(f'{lk}:\ns_waitcnt vmcnt(0)')
        for e in range(4):
            o = v(OA + 16 * e, 16)
            A(f'v_mfma_f32_32x32x16_bf16 {o}, {r(VF+8*e,4)}, v[{SX}:{SX+3}], 0')
            A(f'v_mfma_f32_32x32x16_bf16 {o}, {r(VF+8*e+4,4)}, v[{SX+4}:{SX+7}], {o}')
    vpoll(A, 6, S_DEP, S_NEED, T + 8)
    for x in loadlist(QF[0], S_Q): A(x)
    A('s_waitcnt vmcnt(0)')
    pre(QF[0])
    A('RAT_loop:')
    for par in range(2):
        qf, qn = QF[par], QF[1 - par]
        stamp(A, 4)
        vpoll(A, 1, S_RF, S_NEED, T + 8)
        stamp(A, 0)
        vm.reset()
        kt = [vm.issue(f'buffer_load_dwordx4 {r(KMF+4*i,4)}, v{V_L16}, s[4:7], s{S_KM} offen offset:{1024*i} sc1') for i in range(4)]
        A(f'''
        s_cmp_lt_u32 s{S_NEED}, {L.SPLIT}
        s_cselect_b32 s{S_DEPM}, s{S_DEPM}, 0
        s_xor_b32 s{S_DEP}, s{S_DEP}, s{S_DEPM}
        ''')
        sload(A, [6], S_DEP)
        A(f's_add_u32 s{S_NB}, s{S_NEED}, 1\ns_add_u32 s{S_DS}, s{S_Q}, 262144\ns_waitcnt lgkmcnt(0)')
        smin(A, 6)
        A(f'''
        s_cmp_ge_u32 s{S_PD}, s{S_NB}
        s_cselect_b32 s{S_PRE}, 1, 0
        s_cselect_b32 s{S_DL}, s{S_DS}, s{S_Q}
        ''')
        ll = loadlist(qn, S_DL)
        lt = []
        def ld(n=1):
            for _ in range(n):
                if ll: lt.append(vm.issue(ll.pop(0)))
        ld(int(os.environ.get('ATL', '4')))
        for u in range(2):
            vm.wait(kt[u])
            for a_ in range(4):
                c = '0' if u == 0 else v(SM + 16 * a_, 16)
                A(f'v_mfma_f32_32x32x16_bf16 {v(SM+16*a_,16)}, {r(KMF+4*u,4)}, {r(qf+4*(a_+4*u),4)}, {c}')
                if a_ & 1: ld()
        stamp(A, 1)
        A('s_nop 7')
        ld()
        A(f'''
        v_pk_add_f32 v[{SM}:{SM+1}], v[{SM}:{SM+1}], v[{SM+20}:{SM+21}]
        v_pk_add_f32 v[{SM+2}:{SM+3}], v[{SM+2}:{SM+3}], v[{SM+22}:{SM+23}]
        v_pk_add_f32 v[{SM}:{SM+1}], v[{SM}:{SM+1}], v[{SM+40}:{SM+41}]
        v_pk_add_f32 v[{SM+2}:{SM+3}], v[{SM+2}:{SM+3}], v[{SM+42}:{SM+43}]
        v_pk_add_f32 v[{SM}:{SM+1}], v[{SM}:{SM+1}], v[{SM+60}:{SM+61}]
        v_pk_add_f32 v[{SM+2}:{SM+3}], v[{SM+2}:{SM+3}], v[{SM+62}:{SM+63}]
        v_max3_f32 v{M0}, v{SM}, v{SM+1}, v{SM+2}
        v_max_f32 v{M0}, v{M0}, v{SM+3}
        ''')
        xh('v_max_f32', M0, M1)
        ld()
        A(f'''
        v_mul_f32 v{M0}, s{S_C0}, v{M0}
        v_max_f32 v{M0}, v{M0}, v{MXC}
        v_sub_f32 v{AL}, v{MXC}, v{M0}
        ''')
        for i in range(4): A(f'v_fma_f32 v{SM+i}, v{SM+i}, s{S_C0}, -v{M0}')
        A(f'v_exp_f32 v{AL}, v{AL}')
        for i in range(4): A(f'v_exp_f32 v{SM+i}, v{SM+i}')
        ld()
        A(f'''
        v_fma_f32 v{LX}, v{LX}, v{AL}, v{SM}
        v_add_f32 v{M1}, v{SM+1}, v{SM+2}
        v_add_f32 v{LX}, v{LX}, v{SM+3}
        v_add_f32 v{LX}, v{LX}, v{M1}
        ''')
        xh('v_add_f32', LX, M1)
        A(f'v_rcp_f32 v{LX}, v{LX}')
        ld()
        for i in range(4): A(f'v_mul_f32 v{SM+i}, v{SM+i}, v{LX}')
        A(f'''
        v_mul_f32 v{AL}, v{AL}, v{LX}
        v_cvt_pk_bf16_f32 v{SM}, v{SM}, v{SM+1}
        v_cvt_pk_bf16_f32 v{SM+1}, v{SM+2}, v{SM+3}
        v_mov_b32 v{AL+1}, v{AL}
        s_add_u32 s{S_T0}, s{S_DST}, 4096
        ''')
        vm.wait(kt[3])
        for e in range(4):
            for i in range(0, 16, 2):
                A(f'v_pk_mul_f32 v[{OA+16*e+i}:{OA+16*e+i+1}], v[{OA+16*e+i}:{OA+16*e+i+1}], v[{AL}:{AL+1}]')
            if e & 1: ld()
        A('s_nop 0')
        for e in range(4):
            o = v(OA + 16 * e, 16)
            A(f'v_mfma_f32_32x32x8_bf16 {o}, {r(VMF+2*e,2)}, v[{SM}:{SM+1}], {o}')
            if e & 1: ld()
        A('s_nop 7')
        for e in range(4):
            for j in range(8): A(f'v_cvt_pk_bf16_f32 v{PK+8*e+j}, v{OA+16*e+2*j}, v{OA+16*e+2*j+1}')
            so = S_DST if e < 2 else S_T0
            vm.issue(f'buffer_store_dwordx4 v[{PK+8*e}:{PK+8*e+3}], v{V_L16}, s[4:7], s{so} offen offset:{(e%2)*2048} sc1')
            vm.issue(f'buffer_store_dwordx4 v[{PK+8*e+4}:{PK+8*e+7}], v{V_L16}, s[4:7], s{so} offen offset:{(e%2)*2048+1024} sc1')
        assert len(lt) >= 16
        nlate = len(ll)
        ld(24)
        stamp(A, 2)
        l1, l2 = A.label('G'), A.label('G')
        A(f'''
        s_mov_b32 s{S_B}, s{S_NEED}
        s_mov_b32 s{S_NEED}, s{S_NB}
        s_mov_b32 s{S_Q}, s{S_DS}
        s_add_u32 s{S_DST}, s{S_DST}, 262144
        s_add_u32 s{S_KM}, s{S_KM}, 131072
        s_cmp_lg_u32 s{S_PRE}, 0
        s_cbranch_scc1 {l1}
        s_waitcnt vmcnt(0)
        ''')
        put_flag(A, M0, V_L16, S_B)
        A(f's_cmp_ge_u32 s{S_B}, 64\ns_cbranch_scc1 L_next')
        vpoll(A, 6, S_DEP, S_NEED, T + 8)
        for x in loadlist(qn, S_Q): A(x)
        A(f's_waitcnt vmcnt(8)\ns_branch {l2}\n{l1}:')
        vm.wait(lt[15])
        A(f'{l2}:')
        stamp(A, 3)
        pre(qn, nlate)
    A('s_branch RAT_loop')
```

```python
import re, os
MCRED = int(os.environ.get('MCRED', '1'))
RE_REG = re.compile(r'(?<![\w.])(-?)([vas])(?:(\d+)|\[(\d+):(\d+)\])(?![\w])')
TRANS = ('v_exp_', 'v_log_', 'v_rcp_', 'v_rsq_', 'v_sqrt_', 'v_sin_', 'v_cos_')
def regs(tok):
    out = set()
    for m in RE_REG.finditer(tok):
        k = m.group(2)
        lo = int(m.group(3) if m.group(3) is not None else m.group(4))
        hi = int(m.group(3) if m.group(3) is not None else m.group(5))
        out |= {(k, i) for i in range(lo, hi + 1)}
    if re.search(r'\bvcc\b', tok): out.add(('s', 'vcc'))
    if re.search(r'\bm0\b', tok): out.add(('s', 'm0'))
    return out
class I: pass
def parse(line):
    t = line.split(';')[0].strip()
    if not t or t.endswith(':') or t.startswith('.'): return None
    p = t.split(None, 1)
    x = I(); x.op = p[0]; x.txt = t
    ops = [o.strip() for o in p[1].split(',')] if len(p) > 1 else []
    x.ops = ops
    op = x.op
    x.mfma = op.startswith('v_mfma') or op.startswith('v_smfmac')
    x.valu = op.startswith('v_') and not x.mfma
    x.vmem = op.startswith('buffer_') or op.startswith('global_')
    x.ds = op.startswith('ds_')
    x.w = set(); x.r = set()
    x.states = int(ops[0]) + 1 if op == 's_nop' else 1
    if x.mfma:
        x.passes = 8 if '32x32' in op else 4
        x.w = regs(ops[0]); x.a = regs(ops[1]) | regs(ops[2])
        if op.startswith('v_smfmac'):
            x.c = set(x.w); x.a |= regs(ops[3].split()[0])
        else:
            x.c = regs(ops[3])
        x.r = x.a | x.c
    elif x.valu:
        x.w = regs(ops[0])
        for o in ops[1:]: x.r |= regs(o)
        if 'permlane' in op and 'swap' in op:
            x.w |= regs(ops[1]); x.r |= regs(ops[0])
        if op.startswith('v_fmac') or op.startswith('v_dot2c') or op.startswith('v_writelane'): x.r |= regs(ops[0])
        if '_co_' in op: x.w |= regs(ops[1])
    elif x.vmem:
        lds = t.endswith(' lds')
        if 'load' in op and not lds:
            x.w = regs(ops[0])
            for o in ops[1:]: x.r |= regs(o)
        else:
            for o in ops: x.r |= regs(o)
            if lds: x.r.add(('s', 'm0'))
        x.lds = lds
        x.wide = ('store' in op and ('x4' in op or 'x3' in op))
        if x.wide: x.data = regs(ops[0]) if op.startswith('buffer') else regs(ops[1])
    elif x.ds:
        if 'read' in op:
            x.w = regs(ops[0])
            for o in ops[1:]: x.r |= regs(o)
        else:
            for o in ops: x.r |= regs(o)
    else:
        if op.startswith('s_') and ops and not op.startswith(('s_cmp', 's_cbranch', 's_branch', 's_waitcnt', 's_nop', 's_sleep', 's_bitcmp', 's_atomic')):
            x.w = regs(ops[0])
            for o in ops[1:]: x.r |= regs(o)
    return x
def need(p, c):
    n = 0
    vg = lambda s: {r for r in s if r[0] in 'va'}
    sg = lambda s: {r for r in s if r[0] == 's'}
    if p.mfma:
        big = {4: 8, 8: 12}[p.passes]
        if c.mfma:
            if p.w & c.a: n = max(n, big)
            if p.w & c.c and (p.w != c.c or p.op != c.op): n = max(n, big - 2)
            if p.w & c.w and not (p.w & c.c): n = max(n, big - 2)
        elif c.valu or c.vmem or c.ds:
            if p.w & (c.r | c.w): n = max(n, big)
            if c.valu and (p.c & c.w): n = max(n, {4: 3, 8: 7}[p.passes])
    elif p.valu:
        if c.mfma and vg(p.w) & c.r: n = max(n, 2)
        if c.valu:
            if ('_dpp' in c.op or 'permlane' in c.op) and vg(p.w) & c.r: n = max(n, 2)
            if c.op.startswith(('v_readlane', 'v_readfirstlane')) and vg(p.w) & c.r: n = max(n, 1)
            if p.op.startswith(TRANS) and not c.op.startswith(TRANS) and p.w & c.r: n = max(n, 1)
            if sg(p.w) & c.r: n = max(n, 2)
            if p.op.startswith('v_dot') and p.op != c.op and p.w & (c.r | c.w): n = max(n, 3)
        if c.vmem and sg(p.w) & c.r: n = max(n, 5)
    elif p.vmem:
        if p.wide and c.valu and p.data & c.w: n = max(n, 2)
    elif ('s', 'm0') in p.w and c.vmem and c.lds:
        n = max(n, 1)
    return n
def run(lines, fix=True, verbose=False):
    out = []; hist = []
    nfix = 0
    for ln in lines:
        x = parse(ln)
        if x is None:
            out.append(ln); continue
        d = 0; dm = 0; short = 0
        for p in reversed(hist):
            k = need(p, x)
            dd = dm if p.mfma else d
            if k > dd: short = max(short, k - dd)
            d += p.states
            dm += (MCRED if p.passes == 4 else 2 * MCRED if MCRED > 1 else 1) if p.mfma else p.states
            if d >= 12: break
        if short:
            nfix += 1
            if verbose: print('hazard fix', short, 'before:', x.txt)
            y = parse(f's_nop {short-1}')
            out.append(f'    s_nop {short-1}'); hist.append(y)
        out.append(ln); hist.append(x)
        if x.op in ('s_branch', 's_endpgm'): hist = []
        hist = hist[-14:]
    return out, nfix
```

```python
from asm import *
import layout as L
import math, os
OPT=dict(x.split('=') for x in os.environ.get('ROPT','').split(',') if x)

V_L16, V_IDX, V_SELT, V_PUBA, V_PUBC, V_PUB2, V_GATH = 0, 1, 2, 4, 5, 6, 7
V_SWR, V_SRD, V_OWR, V_KXO, V_VXO, V_KMO, V_VMO, V_WLDS = 8, 9, 10, 11, 12, 13, 14, 15
P = 16
AS = 56
FR = 64
LDS_MEM = 0
LDS_S = 10240
LDS_SELR = 15360
LDS_W = 16384
S_WAVE, S_P, S_LAYER = 12, 13, 14
S_T, S_INB, S_RED, S_MCUR, S_MRE, S_GOFF, S_KX, S_VX, S_KM, S_PF, S_STR, S_UNIT, S_SPIN, S_ERR = range(16, 30)
S_T0, S_T1, S_T2, S_T3 = 30, 31, 32, 33
S_G1K, S_MBASE, S_FLAG, S_KVF, S_KVM, S_MMD = 34, 35, 36, 37, 38, 39
S_MV, S_MK, S_MP, S_SC, S_ONE = 40, 42, 44, 46, 62
S_FD = 15
S_ST = 60
SPIN_CAP = 1 << 17

def gen_R(A, NSTEP=64, hop_sc='', pfx='R'):
    pr = lambda m, ss: [(m, s_, t) for s_ in ss for t in (0, 1)]
    vorder = [8, 9, 0, 1, 2, 3, 4, 5, 6, 7]
    pA, pB, pC = [int(c) for c in OPT.get('vpos', '309')]
    o89 = lambda s_: [('o', s_, 8), ('o', s_, 9)]
    chains = [
        [('g', pr('q', [0])), ('l', pr('q', [2])), ('l', pr('q', [4])), ('l', pr('q', [6])), ('l', pr('q', [8])),
         ('l', pr('v', [vorder[pA]])), ('g', o89(0))],
        [('g', pr('q', [1])), ('l', pr('q', [3])), ('l', pr('q', [5])), ('l', pr('q', [7])),
         ('l', pr('v', [vorder[pB]])), ('g', pr('v', [vorder[pC]])), ('g', o89(1))],
    ]
    lds_list, l2_list, slot_of, nxt = [], [], {}, {}
    for ci, ch in enumerate(chains):
        for k, (c_, fs) in enumerate(ch):
            (lds_list if c_ == 'l' else l2_list).extend(fs)
            for i, f in enumerate(fs):
                slot_of[f] = 2 * ci + i
                nxt[f] = ch[(k + 1) % len(ch)][1][i]
    first = chains[0][0][1] + chains[1][0][1]
    NL2 = len(l2_list)
    assert len(lds_list) == 18 and NL2 == 10
    allf = [(m, s, t) for m in 'qkv' for s in range(10) for t in (0, 1)] + [('o', s, t) for s in (0, 1) for t in range(10)]
    res = [f for f in allf if f not in lds_list and f not in l2_list]
    assert len(res) == 52
    slot_reg = [FR + 8 * (52 + i) for i in range(4)]
    reg_of = {f: FR + 8 * i for i, f in enumerate(res)}
    vm = Sb(A, 'vmcnt', 63)
    lg = Sb(A, 'lgkmcnt', 15)
    nst = [0]
    import asm as _asm
    NBS = int(os.environ.get('NBS', '0')) and STAMP
    PAIRS = [50, 52, 54, 80, 84, 86, 88, 92, 98, 100]
    HS = OPT.get('hs')
    PTS = OPT.get('pts', '').split('.') if OPT.get('pts') else []
    if PTS: HS = True
    def pt(name):
        if name in PTS: stamp(1 + PTS.index(name), True)
    def hstamp(k):
        if HS and not PTS: stamp(k, True)
    def stamp(k, h=False):
        if HS and not h and k in (1, 2, 3, 4, 5, 6):
            return
        if NBS and k < 8:
            A(f's_memtime s[{PAIRS[k]}:{PAIRS[k]+1}]')
            if k == 7:
                A('s_waitcnt lgkmcnt(0)')
                for j in range(8):
                    prev = 76 if j == 0 else PAIRS[j - 1]
                    A(f's_sub_u32 s77, s{PAIRS[j]}, s{prev}\ns_add_u32 s{64+j}, s{64+j}, s77')
                if OPT.get('trace'):
                    lk = A.label('T')
                    A(f's_and_b32 s77, s{S_T}, 7\ns_cmp_lg_u32 s77, 7\ns_cbranch_scc1 {lk}')
                    for j in range(8):
                        A(f'v_mov_b32 v{P+24+j}, s{PAIRS[j]}')
                    A(f'''s_lshl_b32 s77, s{S_LAYER}, 7
                    s_add_u32 s77, s77, s{S_UNIT}
                    s_lshl_b32 s77, s77, 8
                    s_lshr_b32 s74, s{S_T}, 3
                    s_lshl_b32 s74, s74, 5
                    s_add_u32 s77, s77, s74
                    s_add_u32 s77, s77, {L.DBG + 0x80000}
                    s_mov_b64 exec, 1
                    buffer_store_dwordx4 v[{P+24}:{P+27}], v{V_L16}, s[4:7], s77 offen
                    buffer_store_dwordx4 v[{P+28}:{P+31}], v{V_L16}, s[4:7], s77 offen offset:16
                    s_mov_b64 exec, -1
                    s_waitcnt vmcnt(0)
                    {lk}:''')
                A('s_memtime s[74:75]\ns_waitcnt lgkmcnt(0)\ns_mov_b32 s76, s74')
        else:
            _asm.stamp(A, k, lg)

    T = P
    A(f'''
    v_mbcnt_lo_u32_b32 v{T}, -1, 0
    v_mbcnt_hi_u32_b32 v{T}, -1, v{T}
    v_and_b32 v{T+1}, 15, v{T}             ; c / n / i
    v_lshrrev_b32 v{T+2}, 4, v{T}          ; g
    v_lshlrev_b32 v{V_L16}, 4, v{T}
    ; idx
    v_and_b32 v{T+3}, 1, v{T}
    v_mov_b32 v{V_IDX}, 0x44444444
    v_mov_b32 v{T+4}, 0xeeeeeeee
    v_bfe_u32 v{T+5}, v{T}, 1, 1
    v_cmp_eq_u32 vcc, 1, v{T+5}
    s_nop 1
    v_cndmask_b32 v{V_IDX}, v{V_IDX}, v{T+4}, vcc
    v_lshlrev_b32 v{T+4}, 2, v{T+2}
    v_sub_u32 v{T+4}, v{T+1}, v{T+4}       ; n-4g
    v_mov_b32 v{T+5}, 0x3f80
    v_mov_b32 v{T+6}, 0x3f800000
    ''')
    for d in range(2):
        A(f'''
        v_mov_b32 v{V_SELT+d}, 0
        v_cmp_eq_u32 vcc, {2*d}, v{T+4}
        s_nop 1
        v_cndmask_b32 v{V_SELT+d}, v{V_SELT+d}, v{T+5}, vcc
        v_cmp_eq_u32 vcc, {2*d+1}, v{T+4}
        s_nop 1
        v_cndmask_b32 v{V_SELT+d}, v{V_SELT+d}, v{T+6}, vcc
        ''')
    for d in range(4):
        A(f'''
        v_mov_b32 v{T+8+d}, 0
        v_cmp_eq_u32 vcc, {d}, v{T+1}
        s_nop 1
        v_cndmask_b32 v{T+8+d}, v{T+8+d}, v{T+5}, vcc
        v_cmp_eq_u32 vcc, {4+d}, v{T+1}
        s_nop 1
        v_cndmask_b32 v{T+8+d}, v{T+8+d}, v{T+6}, vcc
        ''')
    A(f'ds_write_b128 v{V_L16}, v[{T+8}:{T+11}] offset:{LDS_SELR}')
    A(f'''
    ; pubA = (w*20 + (l>>3))*4096 + p*128 + (l&7)*16
    s_mul_i32 s{S_T0}, s{S_WAVE}, {20*4096}
    s_lshl_b32 s{S_T1}, s{S_P}, 7
    s_add_u32 s{S_T0}, s{S_T0}, s{S_T1}
    v_lshrrev_b32 v{T+4}, 3, v{T}
    v_lshlrev_b32 v{T+4}, 12, v{T+4}
    v_and_b32 v{T+5}, 7, v{T}
    v_lshlrev_b32 v{T+6}, 4, v{T+5}
    v_add3_u32 v{V_PUBA}, v{T+4}, v{T+6}, s{S_T0}
    v_lshlrev_b32 v{T+4}, 12, v{T+2}
    v_lshlrev_b32 v{T+6}, 3, v{T+1}
    s_add_u32 s{S_T0}, s{S_T0}, {16*4096}
    v_add3_u32 v{V_PUBC}, v{T+4}, v{T+6}, s{S_T0}
    ; unit
    s_lshl_b32 s{S_UNIT}, s{S_WAVE}, 5
    s_add_u32 s{S_UNIT}, s{S_UNIT}, s{S_P}
    s_mul_i32 s{S_T0}, s{S_UNIT}, 3277
    s_lshr_b32 s{S_T0}, s{S_T0}, 16          ; uw
    s_mul_i32 s{S_T1}, s{S_T0}, 20
    s_sub_u32 s{S_T1}, s{S_UNIT}, s{S_T1}    ; ui
    s_mul_i32 s{S_T0}, s{S_T0}, 160
    s_cmp_lt_u32 s{S_T1}, 16
    s_cbranch_scc0 {pfx}_kc
    s_lshr_b32 s{S_T2}, s{S_T1}, 3
    s_lshl_b32 s{S_T2}, s{S_T2}, 6
    s_add_u32 s{S_T0}, s{S_T0}, s{S_T2}
    s_and_b32 s{S_T2}, s{S_T1}, 1
    s_lshl_b32 s{S_T2}, s{S_T2}, 5
    s_add_u32 s{S_T0}, s{S_T0}, s{S_T2}
    s_and_b32 s{S_T1}, s{S_T1}, 7
    s_lshr_b32 s{S_T1}, s{S_T1}, 1           ; g
    s_branch {pfx}_kd
    {pfx}_kc:
    s_sub_u32 s{S_T1}, s{S_T1}, 16
    s_add_u32 s{S_T0}, s{S_T0}, 128
    {pfx}_kd:
    s_lshl_b32 s{S_T0}, s{S_T0}, 1
    s_mul_i32 s{S_T1}, s{S_T1}, 2560
    s_add_u32 s{S_T0}, s{S_T0}, s{S_T1}
    v_mul_u32_u24 v{T+4}, 1280, v{T+2}
    v_lshlrev_b32 v{T+6}, 3, v{T+5}
    v_add3_u32 v{V_PUB2}, v{T+4}, v{T+6}, s{S_T0}
    v_lshrrev_b32 v{T+4}, 2, v{T+1}
    v_lshl_add_u32 v{T+4}, v{T+4}, 1, v{T+3}
    v_mul_u32_u24 v{T+4}, 1280, v{T+4}
    v_lshlrev_b32 v{T+6}, 5, v{T+2}
    v_bfe_u32 v{T+7}, v{T}, 1, 1
    v_lshlrev_b32 v{T+7}, 4, v{T+7}
    v_add3_u32 v{V_GATH}, v{T+4}, v{T+6}, v{T+7}
    ; ci = (l>>2)*2 + (l&1)
    v_lshrrev_b32 v{T+4}, 2, v{T}
    v_lshl_add_u32 v{T+4}, v{T+4}, 1, v{T+3}
    v_lshlrev_b32 v{T+4}, 5, v{T+4}          ; ci*32
    s_lshr_b32 s{S_T0}, s{S_WAVE}, 1
    s_lshl_b32 s{S_T0}, s{S_T0}, 11
    s_and_b32 s{S_T1}, s{S_WAVE}, 1
    s_lshl_b32 s{S_T2}, s{S_T1}, 3
    s_add_u32 s{S_T0}, s{S_T0}, s{S_T2}
    s_lshl_b32 s{S_MMD}, s{S_WAVE}, 2
    s_sub_u32 s{S_MMD}, s{S_MMD}, s{S_T0}
    s_add_u32 s{S_MMD}, s{S_MMD}, 4096
    s_add_u32 s{S_T0}, s{S_T0}, {LDS_S}
    v_add_u32 v{V_SWR}, s{S_T0}, v{T+4}
    v_bfe_u32 v{T+6}, v{T}, 1, 1
    v_xor_b32 v{T+6}, 1, v{T+6}
    v_lshl_add_u32 v{V_SRD}, v{T+6}, 4, v{T+4}
    v_add_u32 v{V_SRD}, {LDS_S}, v{V_SRD}
    ; m = 2*(n>>2) + (n&1)
    v_lshrrev_b32 v{T+4}, 2, v{T+1}
    v_lshl_add_u32 v{T+4}, v{T+4}, 1, v{T+3}
    ; owr = (w>>1)*1024 + (16*(2*(w&1) + (g>>1)) + 2m + (g&1))*16
    v_lshrrev_b32 v{T+6}, 1, v{T+2}             ; g>>1
    v_and_b32 v{T+7}, 1, v{T+2}                 ; g&1
    v_lshlrev_b32 v{T+8}, 4, v{T+6}
    v_and_b32 v{T+9}, 13, v{T+1}                ; 4*(m>>1) + (m&1)
    v_add_u32 v{T+8}, v{T+8}, v{T+9}
    v_lshl_add_u32 v{T+8}, v{T+7}, 1, v{T+8}
    v_lshlrev_b32 v{T+8}, 4, v{T+8}
    s_lshl_b32 s{S_T0}, s{S_WAVE}, 9            ; (w>>1)*1024 + (w&1)*512
    v_add_u32 v{V_OWR}, s{S_T0}, v{T+8}
    v_lshl_add_u32 v{T+8}, v{T+6}, 3, v{T+4}
    v_lshl_add_u32 v{T+8}, v{T+7}, 5, v{T+8}
    v_lshlrev_b32 v{T+8}, 4, v{T+8}
    s_lshr_b32 s{S_T0}, s{S_WAVE}, 1
    s_lshl_b32 s{S_T0}, s{S_T0}, 10
    s_and_b32 s{S_T1}, s{S_WAVE}, 1
    s_lshl_b32 s{S_T2}, s{S_T1}, 8
    s_add_u32 s{S_T2}, s{S_T2}, s{S_T0}
    v_add_u32 v{V_KMO}, s{S_T2}, v{T+8}
    v_and_b32 v{T+8}, 9, v{T+1}
    v_bfe_u32 v{T+9}, v{T+1}, 1, 1
    v_lshl_add_u32 v{T+8}, v{T+9}, 2, v{T+8}
    v_bfe_u32 v{T+9}, v{T+1}, 2, 1
    v_lshl_add_u32 v{T+8}, v{T+9}, 1, v{T+8}
    v_lshlrev_b32 v{T+8}, 1, v{T+8}
    v_lshl_add_u32 v{T+8}, v{T+6}, 5, v{T+8}
    v_lshlrev_b32 v{T+8}, 4, v{T+8}
    v_lshl_add_u32 v{T+8}, v{T+7}, 2, v{T+8}
    s_lshl_b32 s{S_T2}, s{S_T1}, 3
    s_add_u32 s{S_T2}, s{S_T2}, s{S_T0}
    v_add_u32 v{V_VMO}, s{S_T2}, v{T+8}
    v_add_u32 v{V_VMO}, {LDS_MEM+8192}, v{V_VMO}
    s_mov_b32 s{S_ONE}, 0x3f803f80
    s_mov_b32 s{S_ONE+1}, 0x3f803f80
    v_lshrrev_b32 v{T+8}, 3, v{T+1}             ; gi>>1
    v_lshlrev_b32 v{T+8}, 4, v{T+8}
    v_and_b32 v{T+9}, 7, v{T+1}                 ; 4(gi&1)+b
    v_add_u32 v{T+8}, v{T+8}, v{T+9}
    v_lshl_add_u32 v{T+8}, v{T+7}, 5, v{T+8}    ; + 32hf
    v_lshlrev_b32 v{T+8}, 4, v{T+8}
    v_lshl_add_u32 v{T+8}, v{T+6}, 10, v{T+8}
    s_lshl_b32 s{S_T0}, s{S_WAVE}, 11
    v_add_u32 v{V_KXO}, s{S_T0}, v{T+8}
    v_and_b32 v{T+8}, 9, v{T+1}
    v_bfe_u32 v{T+9}, v{T+1}, 1, 1
    v_lshl_add_u32 v{T+8}, v{T+9}, 2, v{T+8}
    v_bfe_u32 v{T+9}, v{T+1}, 2, 1
    v_lshl_add_u32 v{T+8}, v{T+9}, 1, v{T+8}
    v_lshlrev_b32 v{T+8}, 1, v{T+8}
    v_lshl_add_u32 v{T+8}, v{T+7}, 5, v{T+8}
    v_lshlrev_b32 v{T+8}, 4, v{T+8}
    v_lshl_add_u32 v{T+8}, v{T+6}, 10, v{T+8}
    v_add_u32 v{V_VXO}, s{S_T0}, v{T+8}
    ; wlds
    s_mul_i32 s{S_T0}, s{S_WAVE}, {18*2048}
    s_add_u32 s{S_T0}, s{S_T0}, {LDS_W}
    v_add_u32 v{V_WLDS}, s{S_T0}, v{V_L16}
    s_mul_i32 s{S_T0}, s{S_LAYER}, {L.R_INBOX(1)-L.R_INBOX(0)}
    s_add_u32 s{S_INB}, s{S_T0}, {L.R_INBOX(0)}
    s_lshl_b32 s{S_T1}, s{S_UNIT}, 12
    s_add_u32 s{S_RED}, s{S_INB}, s{S_T1}
    s_add_u32 s{S_MBASE}, s{S_T0}, {L.R_MEM(0)}
    s_mov_b32 s{S_MCUR}, 0
    s_mov_b32 s{S_MRE}, {2*10240}
    s_mul_i32 s{S_T1}, s{S_WAVE}, 3
    s_min_u32 s{S_T1}, s{S_T1}, 7
    s_lshl_b32 s{S_GOFF}, s{S_T1}, 7
    s_lshl_b32 s{S_G1K}, s{S_T1}, 10
    s_mul_i32 s{S_T1}, s{S_P}, {4*NL2*2048}
    s_mul_i32 s{S_T2}, s{S_WAVE}, {NL2*2048}
    s_add_u32 s{S_T1}, s{S_T1}, s{S_T2}
    s_add_u32 s{S_STR}, s{S_T0}, s{S_T1}
    s_add_u32 s{S_STR}, s{S_STR}, {L.R_STREAM(0)}
    s_mul_i32 s{S_T0}, s{S_LAYER}, {L.KX(1)-L.KX(0)}
    s_lshl_b32 s{S_T1}, s{S_P}, 13
    s_add_u32 s{S_T0}, s{S_T0}, s{S_T1}
    s_add_u32 s{S_KX}, s{S_T0}, {L.KX(0)}
    s_add_u32 s{S_VX}, s{S_T0}, {L.VX(0)}
    s_mul_i32 s{S_T0}, s{S_LAYER}, {L.KM(1)-L.KM(0)}
    s_lshl_b32 s{S_T1}, s{S_P}, 12
    s_add_u32 s{S_T0}, s{S_T0}, s{S_T1}
    s_add_u32 s{S_KM}, s{S_T0}, {L.KM(0)}
    s_lshl_b32 s{S_T0}, s{S_WAVE}, 10
    s_add_u32 s{S_KM}, s{S_KM}, s{S_T0}
    s_add_u32 s47, s{S_T0}, {LDS_MEM+2048}
    s_add_u32 s{S_T1}, s{S_T0}, {LDS_MEM+6144}
    s_cmp_lt_u32 s{S_WAVE}, 2
    s_cselect_b32 s47, s47, s{S_T1}
    s_mov_b32 s{S_PF}, s{S_KM}
    s_mul_i32 s{S_T0}, s{S_LAYER}, {L.FLAYER}
    s_lshl_b32 s{S_T1}, s{S_P}, 7
    s_add_u32 s{S_FLAG}, s{S_T0}, s{S_T1}
    s_add_u32 s{S_FLAG}, s{S_FLAG}, {L.flag('R')}
    s_mov_b32 s{S_FD}, 0
    s_lshl_b32 s{S_T1}, s{S_P}, 10
    s_add_u32 s{S_KVF}, s{S_T0}, s{S_T1}
    s_lshr_b32 s{S_T1}, s{S_WAVE}, 1
    s_lshl_b32 s{S_T1}, s{S_T1}, 7
    s_add_u32 s{S_KVF}, s{S_KVF}, s{S_T1}
    s_add_u32 s{S_KVF}, s{S_KVF}, {L.flag('QKV')}
    s_sub_u32 s{S_KVM}, 1, s{S_LAYER}
    s_lshl_b32 s{S_KVM}, s{S_KVM}, 15
    s_mov_b32 s{S_MV}, 0xcccccccc
    s_mov_b32 s{S_MV+1}, 0xcccccccc
    s_mov_b32 s{S_MK}, 0x33333333
    s_mov_b32 s{S_MK+1}, 0x33333333
    s_mov_b32 s{S_MP}, 0x00ff00ff
    s_mov_b32 s{S_MP+1}, 0
    s_mov_b32 s{S_SC}, {hex(f32bits(128 ** -0.5 * math.log2(math.e)))}
    s_mov_b32 s{S_ERR}, 0
    s_mov_b32 s{S_T}, 0
    s_mov_b32 s48, 0x05040100
    s_mov_b32 s49, 0x07060302
    ''')
    WQ = T + 12
    WO4 = T + 13
    WO2 = T + 14
    A(f'''
    v_lshlrev_b32 v{T+8}, 4, v{T+6}
    v_lshl_add_u32 v{T+8}, v{T+7}, 2, v{T+8}
    v_lshlrev_b32 v{T+9}, 13, v{T+8}
    v_lshl_add_u32 v{T+9}, v{T+1}, 2, v{T+9}
    s_lshl_b32 s{S_T0}, s{S_P}, 8
    s_lshl_b32 s{S_T1}, s{S_WAVE}, 6
    s_add_u32 s{S_T0}, s{S_T0}, s{S_T1}
    v_add_u32 v{WQ}, s{S_T0}, v{T+9}
    v_mul_u32_u24 v{T+9}, 1280, v{T+8}
    s_mul_i32 s{S_T0}, s{S_P}, 163840
    s_mul_i32 s{S_T1}, s{S_WAVE}, 320
    s_add_u32 s{S_T0}, s{S_T0}, s{S_T1}
    v_lshl_add_u32 v{T+10}, v{T+1}, 3, v{T+9}
    v_add_u32 v{WO4}, s{S_T0}, v{T+10}
    v_lshl_add_u32 v{T+10}, v{T+1}, 2, v{T+9}
    v_add_u32 v{WO2}, s{S_T0}, v{T+10}
    v_add_u32 v{WO2}, 256, v{WO2}
    s_load_dwordx2 s[50:51], s[0:1], 16
    s_load_dwordx2 s[52:53], s[0:1], 24
    s_load_dwordx2 s[54:55], s[0:1], 32
    s_load_dwordx2 s[56:57], s[0:1], 40
    s_load_dwordx2 s[58:59], s[0:1], 8
    s_waitcnt lgkmcnt(0)
    s_mov_b32 s10, 5242880
    s_mov_b32 s11, 0x20000
    ''')
    lg.reset()
    cur_srd = [None]
    def set_srd(m):
        if cur_srd[0] != m:
            b = {'q': 50, 'k': 52, 'v': 54, 'o': 56}[m]
            A(f's_mov_b32 s8, s{b}\ns_mov_b32 s9, s{b+1}')
            cur_srd[0] = m
    def rowoff(s, i):
        hb, jd = i >> 2, i & 3
        return 64 * s + 32 * hb + 8 * (jd & 1) + 2 * (jd >> 1)
    groups = []
    for m in 'qkv':
        for s in range(10):
            groups.append([(m, s, 0), (m, s, 1)])
    for s in (0, 1):
        groups.append([('o', s, t) for t in range(0, 4)])
        groups.append([('o', s, t) for t in range(4, 8)])
        groups.append([('o', s, t) for t in (8, 9)])
    def cls(g):
        if g[0] not in reg_of: return 0
        return 1 if reg_of[g[0]] >= 256 and reg_of[g[-1]] >= 256 else 2
    groups.sort(key=cls)
    TMPA = FR
    TMPO = T + 16
    pend = []
    def issue_group(g, base):
        m, s = g[0][0], g[0][1]
        set_srd(m)
        n = len(g)
        tok = None
        for i in range(8):
            for b in (0, 1):
                row = rowoff(s, i) + b
                if m != 'o':
                    A(f's_mov_b32 s{S_T0}, {row*8192}')
                    tok = vm.issue(f'buffer_load_dword v{base+2*i+b}, v{WQ}, s[8:11], s{S_T0} offen')
                elif n == 4:
                    A(f's_mov_b32 s{S_T0}, {row*1280 + 128*(g[0][2]>>2)}')
                    tok = vm.issue(f'buffer_load_dwordx2 v[{base+4*i+2*b}:{base+4*i+2*b+1}], v{WO4}, s[8:11], s{S_T0} offen')
                else:
                    A(f's_mov_b32 s{S_T0}, {row*1280}')
                    tok = vm.issue(f'buffer_load_dword v{base+2*i+b}, v{WO2}, s[8:11], s{S_T0} offen')
        return tok
    def finish_group(g, base, tok):
        vm.wait(tok)
        n = len(g)
        for fi, f in enumerate(g):
            sel = 48 + (fi & 1)
            direct = f in reg_of and reg_of[f] < 256
            dst = reg_of[f] if direct else TMPO + 8 * (fi & 1)
            if not direct:
                lg.waitall()
            for i in range(8):
                if n == 4:
                    r0 = base + 4 * i + (fi >> 1); r1 = r0 + 2
                else:
                    r0 = base + 2 * i; r1 = r0 + 1
                A(f'v_perm_b32 v{dst+i}, v{r1}, v{r0}, s{sel}')
            if direct:
                continue
            if f in reg_of:
                for i in range(8):
                    A(f'v_accvgpr_write_b32 a{reg_of[f]-256+i}, v{dst+i}')
            elif f in lds_list:
                o = lds_list.index(f) * 2048
                lg.issue(f'ds_write_b128 v{V_WLDS}, v[{dst}:{dst+3}] offset:{o}')
                lg.issue(f'ds_write_b128 v{V_WLDS}, v[{dst+4}:{dst+7}] offset:{o+1024}')
            else:
                o = l2_list.index(f) * 2048
                A(f's_add_u32 s{S_T1}, s{S_STR}, {o}')
                vm.issue(f'buffer_store_dwordx4 v[{dst}:{dst+3}], v{V_L16}, s[4:7], s{S_T1} offen')
                t2 = vm.issue(f'buffer_store_dwordx4 v[{dst+4}:{dst+7}], v{V_L16}, s[4:7], s{S_T1} offen offset:1024')
                A('s_nop 1')
    g01 = [g for g in groups if cls(g) < 2]
    g2 = [g for g in groups if cls(g) == 2]
    NBUF = 3
    q = []
    for gi, g in enumerate(g01):
        base = TMPA + 32 * (gi % (NBUF + 1))
        q.append((g, base, issue_group(g, base)))
        if len(q) > NBUF - 1 + 1:
            finish_group(*q.pop(0))
    while q:
        finish_group(*q.pop(0))
    TB = [T + 16, T + 32]
    lg.waitall()
    q = []
    for gi, g in enumerate(g2):
        assert len(g) == 2 and all(reg_of[f] < 256 for f in g), g
        base = reg_of[g[0]]
        assert reg_of[g[1]] == base + 8
        q.append((g, base, issue_group(g, base)))
        if len(q) > 3:
            finish2(A, vm, *q.pop(0), TB[0])
    while q:
        finish2(A, vm, *q.pop(0), TB[0])
    vm.waitall()
    GB = P + 24
    S_SB = 56
    S_PD = 48
    A(f"""
    s_mov_b32 s8, s58
    s_mov_b32 s9, s59
    s_mov_b32 s10, 10240
    """)
    for i in range(3):
        vm.issue(f'buffer_load_dwordx4 v[{GB+4*i}:{GB+4*i+3}], v{V_GATH}, s[8:11], s{S_GOFF} offen offset:{128*i}')
    for i in range(NL2 // 2):
        A(f's_add_u32 s{S_SB+i}, s{S_STR}, {4096*i}')
    fill_tok = {}
    inloop = [False]
    l2q, ldsq = [], []
    def l2_issue(n=1):
        for _ in range(n):
            if not l2q: return False
            f, h = l2q.pop(0)
            sr = slot_reg[slot_of[f]] + 4 * h
            o = l2_list.index(f) * 2048 + 1024 * h
            if OPT.get('nol2') and inloop[0]:
                if h: fill_tok[f] = None
                continue
            if OPT.get('samel2'): o = 1024 * h
            tok = vm.issue(f'buffer_load_dwordx4 {r(sr,4)}, v{V_L16}, s[4:7], s{S_SB + o // 4096} offen offset:{o % 4096} sc1')
            if h: fill_tok[f] = (vm, tok)
        return True
    def lds_issue(n=1):
        for _ in range(n):
            if not ldsq: return False
            f, h = ldsq.pop(0)
            sr = slot_reg[slot_of[f]] + 4 * h
            o = lds_list.index(f) * 2048 + 1024 * h
            tok = lg.issue(f'ds_read_b128 {r(sr,4)}, v{V_WLDS} offset:{o}')
            if h: fill_tok[f] = (lg, tok)
        return True
    def fill(f):
        fill_tok[f] = 'pending'
        (ldsq if f in lds_list else l2q).extend([(f, 0), (f, 1)])
    def any_issue(n=1):
        for _ in range(n):
            if ldsq: lds_issue(1)
            elif l2q: l2_issue(1)
    def zero(lst):
        for i in lst: A(f'v_mov_b64 v[{P+i}:{P+i+1}], 0')
    for f in first:
        fill(f)
    l2_issue(8)
    zero(range(0, 16, 2))
    vm.waitall(); lg.waitall()
    stamp(9)
    def kvload():
        A(f's_load_dword s{S_PD}, s[4:5], s{S_KVF} glc\ns_load_dword s{S_PD+1}, s[4:5], s{S_KVF} offset:256 glc')
    def kvcheck(lab):
        A(f"""
        s_waitcnt lgkmcnt(0)
        s_min_u32 s{S_PD}, s{S_PD}, s{S_PD+1}
        s_cmp_gt_u32 s{S_PD}, s{S_T}
        s_cbranch_scc1 {lab}
        """)
    A(f'v_add_u32 v{AS+4}, s{S_G1K}, v{V_L16}')
    for i in range(3):
        A(f'ds_write_b128 v{AS+4}, v[{GB+4*i}:{GB+4*i+3}] offset:{LDS_MEM+1024*i}')
    A(f"""
    s_mov_b32 s{S_SPIN}, 0
    {pfx}_in0:
    s_load_dwordx16 s[64:79], s[90:91], 0 glc
    s_load_dword s{S_T0}, s[90:91], 128 glc
    s_add_u32 s{S_SPIN}, s{S_SPIN}, 1
    s_cmp_gt_u32 s{S_SPIN}, {1<<16}
    s_cbranch_scc1 L_exit
    s_waitcnt lgkmcnt(0)
    s_cmp_lt_u32 s{S_T0}, 192
    s_cbranch_scc1 {pfx}_in1
    s_cmp_eq_u32 s{S_LAYER}, 0
    s_cselect_b32 s{S_T1}, s64, s65
    s_cmp_ge_u32 s{S_T1}, 32
    s_cbranch_scc1 {pfx}_in2
    """)
    for i in range(1, 16): A(f's_add_u32 s64, s64, s{64+i}')
    A(f"""
    s_cmp_ge_u32 s64, 256
    s_cbranch_scc1 {pfx}S_kvw
    {pfx}_in1:
    s_sleep 16
    s_branch {pfx}_in0
    {pfx}_in2:
    """)
    _asm.stamp_init(A)
    def emit_loop(pfx, hop_sc):
        fill_tok.clear(); l2q.clear(); ldsq.clear(); vm.reset(); lg.reset()
        A(f'{pfx}_kvw:\ns_mov_b32 s{S_SPIN}, 0\n{pfx}_kvl:')
        kvload()
        kvcheck(f'{pfx}_step' if not STAMP else f'{pfx}_st0')
        A(f"""
        s_add_u32 s{S_SPIN}, s{S_SPIN}, 1
        s_cmp_gt_u32 s{S_SPIN}, {1<<17}
        s_cbranch_scc1 L_exit
        s_sleep 4
        s_branch {pfx}_kvl
        """)
        if STAMP:
            A(f'{pfx}_st0:'); stamp(8)
        A(f'{pfx}_step:')
        inloop[0] = True
        A('s_barrier')
        stamp(0)
        aslots = [AS + 4, P + 16, AS]
        atok = {}
        def aread(s_, sl, key):
            atok[(key, s_)] = lg.issue(f'ds_read_b128 v[{sl}:{sl+3}], v{V_L16} offset:{LDS_MEM+1024*s_}')
        for s_ in range(3):
            aread(s_, aslots[s_], 'qk')
        KX, VX, VA = P + 24, P + 32, P + 16
        vm.issue(f'buffer_load_dwordx4 v[{KX}:{KX+3}], v{V_KXO}, s[4:7], s{S_KX} offen sc1')
        kx_tok = vm.issue(f'buffer_load_dwordx4 v[{KX+4}:{KX+7}], v{V_KXO}, s[4:7], s{S_KX} offen offset:128 sc1')
        VDEL = int(OPT.get('vdel', '3'))
        io_tok = vm.issue(f'buffer_store_dwordx4 v[{P+20}:{P+23}], v{V_L16}, s[4:7], s{S_PF} offen sc1')
        def ready(f):
            if f in reg_of: return
            ft = fill_tok.get(f)
            while ft == 'pending':
                (lds_issue if f in lds_list else l2_issue)(1)
                ft = fill_tok.get(f)
            if ft is not None:
                ft[0].wait(ft[1])
        def smf(acc, areg, f):
            ready(f)
            b = reg_of[f] if f in reg_of else slot_reg[slot_of[f]]
            A(f'v_smfmac_f32_16x16x64_bf16 v[{acc}:{acc+3}], v[{areg}:{areg+3}], {r(b,8)}, v{V_IDX}')
            if f not in reg_of:
                fill(nxt[f])
        for f in first:
            fill_tok.pop(f, None)
        QA = {('q', 0): P, ('q', 1): P + 4, ('k', 0): P + 8, ('k', 1): P + 12}
        for s_ in range(10):
            tks = [atok[('qk', s_)]] + [fill_tok[f][1] for f in ([('q', s_, 0), ('q', s_, 1)] if OPT.get('mw', '1') == '1' else [('q', s_, 0)]) if fill_tok.get(f)]
            lg.wait(max(tks))
            ar = aslots[s_ % 3]
            for k_, (m, t) in enumerate((('q', 0), ('k', 0), ('q', 1), ('k', 1))):
                smf(QA[(m, t)], ar, (m, s_, t))
                lds_issue(1)
                if s_ == 9: zero([16 + 2 * k_])
                if k_ == 3 and s_ + 3 < 10:
                    aread(s_ + 3, aslots[s_ % 3], 'qk')
                if s_ == VDEL and k_ == 1:
                    vm.issue(f'buffer_load_dwordx4 v[{VX}:{VX+3}], v{V_VXO}, s[4:7], s{S_VX} offen sc1')
                if s_ == VDEL + 1 and k_ == 1:
                    vx_tok = vm.issue(f'buffer_load_dwordx4 v[{VX+4}:{VX+7}], v{V_VXO}, s[4:7], s{S_VX} offen offset:16 sc1')
        assert not ldsq
        vs = {'i': 0}
        def vh(n=1):
            for _ in range(n):
                i, t = vs['i'] >> 1, vs['i'] & 1
                if i >= 10: return
                s_ = vorder[i]
                sl = AS + 4 * (i % 2)
                if t == 0:
                    if i >= 2: lg.wait(atok[('v', s_)])
                    ready(('v', s_, 1))
                smf(VA + 4 * t, sl, ('v', s_, t))
                if t == 1 and i + 2 < 10:
                    aread(vorder[i + 2], sl, 'v')
                vs['i'] += 1
        stamp(1); pt('qk')
        vh(2)
        A(f"""
        v_add_f32 v{P+0}, v{P+0}, v{P+2}
        v_add_f32 v{P+1}, v{P+1}, v{P+3}
        v_add_f32 v{P+8}, v{P+8}, v{P+10}
        v_add_f32 v{P+9}, v{P+9}, v{P+11}
        v_cvt_pk_bf16_f32 v{P+1}, v{P+0}, v{P+1}
        v_cvt_pk_bf16_f32 v{P+0}, v{P+8}, v{P+9}
        v_add_f32 v{P+4}, v{P+4}, v{P+6}
        v_add_f32 v{P+5}, v{P+5}, v{P+7}
        v_mfma_f32_16x16x16_bf16 v[{P+8}:{P+11}], v[{P+0}:{P+1}], v[{V_SELT}:{V_SELT+1}], 0
        v_add_f32 v{P+12}, v{P+12}, v{P+14}
        v_add_f32 v{P+13}, v{P+13}, v{P+15}
        v_cvt_pk_bf16_f32 v{P+3}, v{P+4}, v{P+5}
        v_cvt_pk_bf16_f32 v{P+2}, v{P+12}, v{P+13}
        """)
        l2_issue(2)
        A(f'v_mfma_f32_16x16x16_bf16 v[{P+12}:{P+15}], v[{P+2}:{P+3}], v[{V_SELT}:{V_SELT+1}], 0')
        vh(2)
        l2_issue(1)
        pt('t1')
        X = P + 0
        for i in range(4):
            A(f'v_cvt_pk_bf16_f32 v{X+i}, v{P+8+i}, v{P+12+i}')
        vm.wait(kx_tok)
        l2_issue(1)
        SX0, SX1, SMM = P + 4, P + 8, P + 12
        A(f"""
        v_mfma_f32_16x16x32_bf16 v[{SX0}:{SX0+3}], v[{KX}:{KX+3}], v[{X}:{X+3}], 0
        v_mfma_f32_16x16x32_bf16 v[{SX1}:{SX1+3}], v[{KX+4}:{KX+7}], v[{X}:{X+3}], 0
        v_add_u32 v{KX}, s{S_MMD}, v{V_SWR}
        v_mfma_f32_16x16x32_bf16 v[{SMM}:{SMM+3}], v[{X}:{X+3}], v[{X}:{X+3}], 0
        """)
        pt('s')
        vh(1)
        A(f's_mov_b64 exec, s[{S_MV}:{S_MV+1}]')
        lg.issue(f'ds_write2_b64 v{V_SWR}, v[{SX0}:{SX0+1}], v[{SX1}:{SX1+1}] offset0:0 offset1:2')
        lg.issue(f'ds_write2_b64 v{V_SWR}, v[{SX0+2}:{SX0+3}], v[{SX1+2}:{SX1+3}] offset0:128 offset1:130')
        wtok = lg.issue(f'ds_write2_b32 v{KX}, v{SMM}, v{SMM+1} offset0:0 offset1:4')
        A('s_mov_b64 exec, -1')
        pt('sw')
        vh(3)
        l2_issue(1)
        NPRE = int(OPT.get('npre', '2'))
        vh(NPRE)
        lg.wait(max(wtok, atok[('v', 3)]))
        pt('pb')
        A('s_barrier')
        stamp(2); pt('b1')
        R0, R1, R2, R3, R4 = P + 4, P + 8, P + 12, KX, KX + 4
        rt = [lg.issue(f'ds_read_b128 v[{rb}:{rb+3}], v{V_SRD} offset:{1024*(0,2,1,3,4)[i]}') for i, rb in enumerate((R0, R1, R2, R3, R4))]
        vh(6 - NPRE)
        l2_issue(2)
        pt('v4')
        lg.wait(rt[3])
        pt('rd')
        A(f"""
        v_add_f32 v{R0}, v{R0}, v{R0+2}
        v_add_f32 v{R0+1}, v{R0+1}, v{R0+3}
        v_pk_add_f32 v[{R1}:{R1+1}], v[{R1}:{R1+1}], v[{R1+2}:{R1+3}]
        v_pk_add_f32 v[{R2}:{R2+1}], v[{R2}:{R2+1}], v[{R2+2}:{R2+3}]
        v_pk_add_f32 v[{R3}:{R3+1}], v[{R3}:{R3+1}], v[{R3+2}:{R3+3}]
        v_pk_add_f32 v[{R0}:{R0+1}], v[{R0}:{R0+1}], v[{R1}:{R1+1}]
        """)
        lg.wait(rt[4])
        M0, M1 = R1, R1 + 1
        SV = [R0, R0 + 1, R2, R2 + 1, R4]
        PF, PM, ON = R3, X, AS
        A(f"""
        v_pk_add_f32 v[{R4}:{R4+1}], v[{R4}:{R4+1}], v[{R4+2}:{R4+3}]
        v_pk_add_f32 v[{R2}:{R2+1}], v[{R2}:{R2+1}], v[{R3}:{R3+1}]
        v_add_f32 v{R4}, v{R4}, v{R4+1}
        v_max3_f32 v{M0}, v{SV[0]}, v{SV[1]}, v{SV[2]}
        v_max3_f32 v{M0}, v{M0}, v{SV[3]}, v{SV[4]}
        """)
        pt('sum')
        A(f's_mov_b64 exec, s[{S_MK}:{S_MK+1}]')
        lg.issue(f'ds_write_b128 v{V_KMO}, v[{X}:{X+3}] offset:{LDS_MEM+2048}')
        A('s_mov_b64 exec, -1')
        A(f"""
        v_max_f32_dpp v{M0}, v{M0}, v{M0} quad_perm:[2,3,0,1] row_mask:0xf bank_mask:0xf
        v_mov_b32 v{M1}, v{M0}
        """)
        vh(1)
        A(f'v_mov_b32 v{PM+1}, 0')
        A(f"""
        v_permlane16_swap_b32 v{M0}, v{M1}
        v_max_f32 v{M0}, v{M0}, v{M1}
        v_mov_b32 v{M1}, v{M0}
        """)
        vh(1)
        A(f'v_mov_b32 v{PM+2}, 0')
        A(f"""
        v_permlane32_swap_b32 v{M0}, v{M1}
        v_max_f32 v{M0}, v{M0}, v{M1}
        """)
        vh(1)
        pt('max')
        A(f'v_mul_f32 v{M0}, s{S_SC}, v{M0}')
        for k, x in enumerate(SV):
            A(f'v_fma_f32 v{x}, v{x}, s{S_SC}, -v{M0}')
            if k in (0, 2, 3): vh(1)
        assert vs['i'] == 20
        pt('fma')
        for x in SV:
            A(f'v_exp_f32 v{x}, v{x}')
        l2_issue(1)
        A(f"""
        v_cvt_pk_bf16_f32 v{PF}, v{SV[0]}, v{SV[1]}
        v_cvt_pk_bf16_f32 v{PF+1}, v{SV[2]}, v{SV[3]}
        v_mov_b32_dpp v{R4+1}, v{R4} quad_perm:[2,3,0,1] row_mask:0xf bank_mask:0xf
        v_mov_b64 v[{ON}:{ON+1}], s[{S_ONE}:{S_ONE+1}]
        v_mov_b32_dpp v{PF+2}, v{PF} quad_perm:[2,3,0,1] row_mask:0xf bank_mask:0xf
        v_mov_b32_dpp v{PF+3}, v{PF+1} quad_perm:[2,3,0,1] row_mask:0xf bank_mask:0xf
        v_mov_b64 v[{ON+2}:{ON+3}], s[{S_ONE}:{S_ONE+1}]
        v_cvt_pk_bf16_f32 v{PM}, v{R4}, v{R4+1}
        v_pk_add_f32 v[{VA}:{VA+1}], v[{VA}:{VA+1}], v[{VA+2}:{VA+3}]
        v_pk_add_f32 v[{VA+4}:{VA+5}], v[{VA+4}:{VA+5}], v[{VA+6}:{VA+7}]
        """)
        pt('p')
        vm.wait(vx_tok)
        O0, O1, Z = P + 4, P + 8, P + 12
        A(f"""
        v_mfma_f32_16x16x32_bf16 v[{Z}:{Z+3}], v[{ON}:{ON+3}], v[{PF}:{PF+3}], 0
        v_cvt_pk_bf16_f32 v{VA+0}, v{VA+0}, v{VA+1}
        v_cvt_pk_bf16_f32 v{VA+1}, v{VA+4}, v{VA+5}
        v_mfma_f32_16x16x32_bf16 v[{O0}:{O0+3}], v[{VX}:{VX+3}], v[{PF}:{PF+3}], 0
        v_mov_b32 v{PM+3}, v{PM}
        """)
        lg.issue(f'ds_write2_b32 v{V_VMO}, v{VA}, v{VA+1} offset0:0 offset1:4')
        A(f'v_mfma_f32_16x16x32_bf16 v[{O1}:{O1+3}], v[{VX+4}:{VX+7}], v[{PF}:{PF+3}], 0')
        l2_issue(1); zero([18])
        A(f'v_mfma_f32_16x16x16_bf16 v[{Z}:{Z+3}], v[{ON}:{ON+1}], v[{PM}:{PM+1}], v[{Z}:{Z+3}]')
        l2_issue(1); zero([20])
        A(f'v_mfma_f32_16x16x16_bf16 v[{O0}:{O0+3}], v[{VA}:{VA+1}], v[{PM}:{PM+1}], v[{O0}:{O0+3}]')
        l2_issue(1); zero([22])
        A(f'v_mfma_f32_16x16x16_bf16 v[{O1}:{O1+3}], v[{VA}:{VA+1}], v[{PM+2}:{PM+3}], v[{O1}:{O1+3}]')
        pt('pv')
        zero([24, 26])
        A(f'v_rcp_f32 v{Z}, v{Z}')
        zero([28])
        A(f"""
        v_mov_b32 v{Z+1}, v{Z}
        v_mov_b64 v[{P+30}:{P+31}], 0
        v_pk_mul_f32 v[{O0}:{O0+1}], v[{O0}:{O0+1}], v[{Z}:{Z+1}]
        v_pk_mul_f32 v[{O0+2}:{O0+3}], v[{O0+2}:{O0+3}], v[{Z}:{Z+1}]
        v_pk_mul_f32 v[{O1}:{O1+1}], v[{O1}:{O1+1}], v[{Z}:{Z+1}]
        v_pk_mul_f32 v[{O1+2}:{O1+3}], v[{O1+2}:{O1+3}], v[{Z}:{Z+1}]
        """)
        for i in range(4):
            A(f'v_cvt_pk_bf16_f32 v{AS+4+i}, v{O0+i}, v{O1+i}')
        A(f's_mov_b64 exec, s[{S_MV}:{S_MV+1}]')
        lg.issue(f'ds_write_b128 v{V_OWR}, v[{AS+4}:{AS+7}] offset:{LDS_MEM}')
        A('s_mov_b64 exec, -1')
        pt('ow')
        l2_issue(1)
        assert not l2q
        zero([32, 34, 36, 38] + list(range(0, 16, 2)))
        vm.wait(io_tok)
        lg.waitall()
        pt('pb2')
        A('s_barrier')
        stamp(3); pt('b2')
        ot = [lg.issue(f'ds_read_b128 v[{AS+4*s_}:{AS+4*s_+3}], v{V_L16} offset:{LDS_MEM+1024*s_}') for s_ in (0, 1)]
        A(f's_cmp_eq_u32 s{S_T}, {NSTEP-1}\ns_cbranch_scc1 {pfx}_fin')
        zero([16])
        A(f's_add_u32 s{S_T0}, s{S_INB}, {8*4096}')
        pk = []
        def pack(t, dst, packed):
            b = P + 4 * t
            if packed:
                pk.append(f'v_pk_add_f32 v[{b}:{b+1}], v[{b}:{b+1}], v[{b+2}:{b+3}]')
            else:
                pk.extend([f'v_add_f32 v{b}, v{b}, v{b+2}', f'v_add_f32 v{b+1}, v{b+1}, v{b+3}'])
            pk.append(f'v_cvt_pk_bf16_f32 v{dst}, v{b}, v{b+1}')
            if t in (0, 4, 8):
                pk.append(f'v_bfi_b32 v{dst}, 1, s{S_T}, v{dst}')
        def pkpop(n):
            for _ in range(n):
                if pk: A(pk.pop(0))
        ready(('o', 0, 9))
        lg.wait(ot[0])
        pt('o0')
        for t in (8, 9): smf(P + 4 * t, AS, ('o', 0, t))
        for t in range(4):
            smf(P + 4 * t, AS, ('o', 0, t))
            if t & 1: l2_issue(1)
        lg.wait(ot[1])
        for t in range(4):
            smf(P + 4 * t, AS + 4, ('o', 1, t))
            if t & 1: l2_issue(1)
        pt('o1')
        for t in range(4): pack(t, P + t, False)
        for t in range(4, 8):
            smf(P + 4 * t, AS, ('o', 0, t)); pkpop(2 if t > 4 else 1)
        for t in range(4, 8):
            smf(P + 4 * t, AS + 4, ('o', 1, t)); pkpop(2)
            if t == 6:
                assert not pk
                vm.issue(f'buffer_store_dwordx4 v[{P}:{P+3}], v{V_PUBA}, s[4:7], s{S_INB} offen {hop_sc}')
                pack(4, P + 16, False)
        ready(('o', 1, 9))
        for t in (8, 9):
            smf(P + 4 * t, AS + 4, ('o', 1, t)); pkpop(1)
        pt('o2')
        pack(5, P + 17, False); pack(6, P + 18, True); pack(7, P + 19, True); pkpop(20)
        vm.issue(f'buffer_store_dwordx4 v[{P+16}:{P+19}], v{V_PUBA}, s[4:7], s{S_T0} offen {hop_sc}')
        pack(8, P + 32, True); pack(9, P + 33, True); pkpop(20)
        vm.issue(f'buffer_store_dwordx2 v[{P+32}:{P+33}], v{V_PUBC}, s[4:7], s{S_INB} offen {hop_sc}')
        stamp(4); hstamp(1); pt('o3')
        W1 = len(l2q) if not OPT.get('nol2') else 0
        l2_issue(4)
        assert not l2q and not ldsq
        RB2 = [P + 4, P + 8, P + 12, P + 24]
        RD = P + 28
        A(f"""
        v_add_u32 v{AS+5}, s47, v{V_L16}
        v_and_b32 v{AS+4}, 0xf0, v{V_L16}
        ds_read_b128 v[{P+20}:{P+23}], v{AS+5}
        ds_read_b128 v[{AS}:{AS+3}], v{AS+4} offset:{LDS_SELR}
        s_add_u32 s{S_T2}, s{S_MBASE}, s{S_MCUR}
        s_add_u32 s{S_T3}, s{S_MBASE}, s{S_MRE}
        s_add_u32 s{S_T}, s{S_T}, 1
        s_cmp_lt_u32 s{S_T}, {L.SPLIT}
        s_cselect_b32 s{S_KVM}, s{S_KVM}, 0
        s_xor_b32 s{S_KVF}, s{S_KVF}, s{S_KVM}
        s_mov_b32 s{S_MRE}, s{S_MCUR}
        s_add_u32 s{S_MCUR}, s{S_MCUR}, 10240
        s_cmp_eq_u32 s{S_MCUR}, {3*10240}
        s_cselect_b32 s{S_MCUR}, 0, s{S_MCUR}
        s_add_u32 s{S_KX}, s{S_KX}, {0 if OPT.get('samekv') else 32*8192}
        s_add_u32 s{S_VX}, s{S_VX}, {0 if OPT.get('samekv') else 32*8192}
        s_mov_b32 s{S_PF}, s{S_KM}
        s_add_u32 s{S_KM}, s{S_KM}, {32*4096}
        s_mov_b32 s{S_SPIN}, 0
        v_mov_b64 v[{P+36}:{P+37}], -1
        s_waitcnt lgkmcnt(0)
        s_barrier
        """)
        hstamp(2)
        kvload()
        A(f's_cmp_ge_u32 s{S_UNIT}, 80\ns_cbranch_scc1 {pfx}_nr')
        if OPT.get('ack', '1') == '1':
            A(f's_waitcnt vmcnt({W1})')
        hstamp(3)
        if OPT.get('d1'): A(f's_sleep {OPT["d1"]}')
        A(f'{pfx}_p1:')
        for i in range(4):
            A(f'buffer_load_dwordx4 v[{RB2[i]}:{RB2[i]+3}], v{V_L16}, s[4:7], s{S_RED} offen offset:{1024*i} sc1')
        A(f's_add_u32 s{S_SPIN}, s{S_SPIN}, 1\ns_cmp_gt_u32 s{S_SPIN}, {SPIN_CAP}\ns_cbranch_scc1 L_exit')
        if STAMP: A('s_add_u32 s78, s78, 1')
        for i in range(4):
            A(f's_waitcnt vmcnt({3-i})')
            c = '0' if i == 0 else f'v[{RD}:{RD+3}]'
            A(f'v_mfma_f32_16x16x32_bf16 v[{RD}:{RD+3}], v[{AS}:{AS+3}], v[{RB2[i]}:{RB2[i]+3}], {c}')
            if i & 1:
                A(f'v_bitop3_b32 v{P+32+(i>>1)}, v{RB2[i-1]}, v{RB2[i]}, s{S_T} bitop3:0x42')
        hstamp(4)
        A(f"""
        v_bitop3_b32 v{P+32}, v{P+32}, v{P+33}, 1 bitop3:0x80
        v_cmp_eq_u32 vcc, 0, v{P+32}
        s_cbranch_vccnz {pfx}_p1
        v_add_f32_dpp v{RD}, v{RD}, v{RD} row_ror:8 row_mask:0xf bank_mask:0xf
        v_add_f32_dpp v{RD+1}, v{RD+1}, v{RD+1} row_ror:8 row_mask:0xf bank_mask:0xf
        v_add_f32_dpp v{RD+2}, v{RD+2}, v{RD+2} row_ror:8 row_mask:0xf bank_mask:0xf
        v_add_f32_dpp v{RD+3}, v{RD+3}, v{RD+3} row_ror:8 row_mask:0xf bank_mask:0xf
        s_mov_b64 exec, s[{S_MP}:{S_MP+1}]
        v_cvt_pk_bf16_f32 v{RD}, v{RD}, v{RD+1}
        v_cvt_pk_bf16_f32 v{RD+1}, v{RD+2}, v{RD+3}
        v_min_u32 v{RD}, -2, v{RD}
        v_min_u32 v{RD+1}, -2, v{RD+1}
        buffer_store_dwordx2 v[{RD}:{RD+1}], v{V_PUB2}, s[4:7], s{S_T2} offen {hop_sc}
        """)
        hstamp(5)
        A(f"""
        buffer_store_dwordx2 v[{P+36}:{P+37}], v{V_PUB2}, s[4:7], s{S_T3} offen {hop_sc}
        s_mov_b64 exec, -1
        {pfx}_g2:
        """)
        stamp(5)
        zero(range(0, 16, 2))
        GT = P + 16
        A(f"""
        v_add_u32 v{AS+4}, s{S_G1K}, v{V_L16}
        s_add_u32 s{S_T2}, s{S_T2}, s{S_GOFF}
        s_mov_b32 s{S_SPIN}, 0
        """)
        hstamp(6)
        A(f's_sleep {OPT.get("d2", "3")}')
        A(f'{pfx}_p2:')
        for i in range(3):
            A(f'buffer_load_dwordx4 v[{GB+4*i}:{GB+4*i+3}], v{V_GATH}, s[4:7], s{S_T2} offen offset:{128*i} sc1')
        if STAMP: A('s_add_u32 s79, s79, 1')
        A(f"""
        s_add_u32 s{S_SPIN}, s{S_SPIN}, 1
        s_cmp_gt_u32 s{S_SPIN}, {SPIN_CAP}
        s_cbranch_scc1 L_exit
        s_waitcnt vmcnt(2)
        ds_write_b128 v{AS+4}, v[{GB}:{GB+3}] offset:{LDS_MEM}
        v_max3_u32 v{GT}, v{GB}, v{GB+1}, v{GB+2}
        s_waitcnt vmcnt(1)
        ds_write_b128 v{AS+4}, v[{GB+4}:{GB+7}] offset:{LDS_MEM+1024}
        v_max3_u32 v{GT}, v{GT}, v{GB+3}, v{GB+4}
        v_max3_u32 v{GT+1}, v{GB+5}, v{GB+6}, v{GB+7}
        s_waitcnt vmcnt(0)
        ds_write_b128 v{AS+4}, v[{GB+8}:{GB+11}] offset:{LDS_MEM+2048}
        v_max3_u32 v{GT}, v{GT}, v{GB+8}, v{GB+9}
        v_max3_u32 v{GT+1}, v{GT+1}, v{GB+10}, v{GB+11}
        v_max_u32 v{GT}, v{GT}, v{GT+1}
        v_cmp_eq_u32 vcc, -1, v{GT}
        s_cbranch_vccnz {pfx}_p2
        """)
        stamp(6)
        vm.reset(); lg.reset()
        stamp(7)
        kvcheck(f'{pfx}_step')
        A(f"""
        s_branch {pfx}_kvw
        {pfx}_nr:
        s_cmp_eq_u32 s{S_FD}, 0
        s_cbranch_scc1 {pfx}_nr2
        s_atomic_add s{S_FD}, s[4:5], s{S_FLAG}
        {pfx}_nr2:
        """)
        if HS:
            for k in (3, 4, 5): hstamp(k)
        A(f"""
        s_sleep {OPT.get('d3', '8')}
        s_cmp_eq_u32 s{S_WAVE}, 3
        s_cselect_b32 s{S_FD}, 1, 0
        s_branch {pfx}_g2
        {pfx}_fin:
        v_add_u32 v{P}, s47, v{V_L16}
        ds_read_b128 v[{P+20}:{P+23}], v{P}
        s_atomic_add s{S_FD}, s[4:5], s{S_FLAG}
        s_waitcnt lgkmcnt(0)
        buffer_store_dwordx4 v[{P+20}:{P+23}], v{V_L16}, s[4:7], s{S_KM} offen sc1
        s_waitcnt vmcnt(0)
        s_barrier
        s_atomic_add s{S_FD}, s[4:5], s{S_FLAG}
        s_waitcnt vmcnt(0) lgkmcnt(0)
        """)
        A('s_branch L_next')
    emit_loop(pfx + 'F', '')
    emit_loop(pfx + 'S', 'sc1')

def finish2(A, vm, g, base, tok, tb):
    vm.wait(tok)
    for i in range(8):
        A(f'v_perm_b32 v{tb+i}, v{base+2*i+1}, v{base+2*i}, s48')
        A(f'v_perm_b32 v{tb+8+i}, v{base+2*i+1}, v{base+2*i}, s49')
    for i in range(0, 16, 2):
        A(f'v_mov_b64 v[{base+i}:{base+i+1}], v[{tb+i}:{tb+i+1}]')

def f32bits(x):
    import struct
    return struct.unpack('<I', struct.pack('<f', x))[0]
```

```python
import sys, os
from asm import *
import layout as L
import rrole, groles
NAME = 'interleave_layers__memory_aug_recurrent_mem_tr__mixer_s_mlp__prompt'
A = Asm()
ROLE = dict(NONE=0, R=1, QK=2, V=3, AT=4, O=5, RL=6, M1=7, M2=8, M3=9, M4=10)
LAB = {1: 'RR', 2: 'RQK', 3: 'RV', 4: 'RAT', 5: 'RO', 6: 'RRL', 7: 'RM1', 8: 'RM2', 9: 'RM3', 10: 'RM4'}
def ent(role, idx=0, layer=0, grp=0): return ROLE[role] | idx << 8 | layer << 16 | grp << 20
def qkv(i, grp): return ent('QK' if i < 32 else 'V', i, 0, grp)
tab = [[0, 0] for _ in range(256)]
for i in range(32):
    tab[i][0] = ent('R', i, 0); tab[32 + i][0] = ent('R', i, 1)
def o_set(l, k): return [ent('O', 4 * j + k, l) for j in range(5)]
def lst(role, n, l, grp=0, first=0): return [ent(role, first + i, l, grp) for i in range(n)]
ded = [
    o_set(0, 0) + o_set(0, 1) + lst('AT', 4, 0) + [0, 0],
    o_set(0, 2) + o_set(0, 3) + lst('AT', 4, 0, first=4) + [0, 0],
    lst('RL', 5, 0) + lst('M1', 5, 0) + lst('M2', 5, 0) + [0],
    lst('M3', 14, 0) + lst('AT', 2, 1),
    lst('M4', 5, 0, 0) + lst('M4', 5, 0, 1) + lst('AT', 6, 1, first=2),
    o_set(1, 0) + o_set(1, 1) + o_set(1, 2) + [0],
]
sec = [
    o_set(1, 3) + lst('RL', 3, 1),
    lst('M1', 5, 1) + lst('RL', 2, 1, first=3) + [0],
    lst('M2', 5, 1) + lst('M3', 3, 1),
    lst('M3', 8, 1, first=3),
    lst('M4', 5, 1, 0) + lst('M3', 3, 1, first=11),
    lst('M4', 5, 1, 1) + [0, 0, 0],
]
for x in range(6):
    base = 64 + 32 * x
    assert len(ded[x]) == 16 and len(sec[x]) == 8
    for i in range(8):
        q = (x + 6 * i)
        tab[base + i][0] = qkv(q, 0)
        tab[base + 8 + i] = [qkv(q, 1), sec[x][i]]
    for i in range(16):
        tab[base + 16 + i][0] = ded[x][i]
KN = NAME + '_kernel'
A.launch(KN, 256, 256, 160 * 1024)
A.begin(KN)
A(f'''
s_cmp_ge_u32 s2, 256
s_cbranch_scc1 L_done
''')
if STAMP:
    A('s_memrealtime s[82:83]\ns_memtime s[86:87]')
A(f'''
s_load_dwordx2 s[4:5], s[0:1], 112
s_load_dwordx2 s[90:91], s[0:1], 104
s_load_dwordx2 s[8:9], s[0:1], 0
s_getreg_b32 s15, hwreg(HW_REG_XCC_ID)
s_and_b32 s15, s15, 15
v_lshrrev_b32 v1, 6, v0
v_mov_b32 v6, 0
v_readfirstlane_b32 s12, v1
''')
if os.environ.get('FAKEX'):
    A('s_mul_i32 s15, s2, 10923\ns_lshr_b32 s15, s15, 16\ns_mul_i32 s15, s15, 6\ns_sub_u32 s15, s2, s15\ns_add_u32 s15, s15, ' + os.environ['FAKEX'])
A(f'''
s_waitcnt lgkmcnt(0)
s_mov_b32 s3, s86
s_mov_b32 s6, {L.WS_BYTES}
s_mov_b32 s7, 0x20000
s_cmp_lg_u32 s12, 0
s_cbranch_scc1 L_norank
s_mov_b32 s13, 1
s_lshl_b32 s16, s15, 2
s_atomic_add s13, s[90:91], s16 glc
s_waitcnt lgkmcnt(0)
s_lshl_b32 s94, s15, 5
s_add_u32 s94, s94, s13
s_cmp_ge_u32 s15, 8
s_cbranch_scc1 L_over
s_cmp_lt_u32 s13, 32
s_cbranch_scc1 L_slot
L_over:
s_mov_b32 s20, 0
L_ov1:
s_load_dwordx16 s[48:63], s[90:91], 0 glc
s_add_u32 s20, s20, 1
s_cmp_gt_u32 s20, {1<<16}
s_cbranch_scc1 L_done
s_waitcnt lgkmcnt(0)
s_mov_b32 s16, s48
''')
for i in range(1, 16): A(f's_add_u32 s16, s16, s{48+i}')
A(f'''
s_sleep 8
s_cmp_lt_u32 s16, 256
s_cbranch_scc1 L_ov1
s_mov_b32 s13, 1
s_atomic_add s13, s[90:91], 132 glc
s_waitcnt lgkmcnt(0)
''')
for x in range(8):
    A(f'''
    s_min_u32 s16, s{48+x}, 32
    s_add_u32 s94, s16, s13
    s_sub_u32 s13, s94, 32
    s_add_u32 s94, s94, {32*x}
    s_cmp_lt_u32 s94, {32*x+32}
    s_cbranch_scc1 L_slot
    ''')
A(f'''
s_branch L_done
L_slot:
v_mov_b32 v5, s94
ds_write_b32 v6, v5
s_waitcnt lgkmcnt(0)
L_norank:
s_barrier
ds_read_b32 v5, v6
s_waitcnt lgkmcnt(0)
v_readfirstlane_b32 s94, v5
s_and_b32 s94, s94, 255
s_barrier
s_cmp_lt_u32 s94, 64
s_cbranch_scc1 L_noinit
s_sub_u32 s16, s94, 64               ; k
s_mov_b32 s10, {2048*1280}
s_mov_b32 s11, 0x20000
s_mul_i32 s17, s16, 21846
s_lshr_b32 s17, s17, 16              ; b = k/3
s_mul_i32 s18, s17, 3
s_sub_u32 s18, s16, s18
s_mul_i32 s18, s18, 7
s_add_u32 s18, s18, s12
s_add_u32 s19, s18, 4
s_min_u32 s19, s19, 19
v_and_b32 v1, 63, v0
v_and_b32 v2, 31, v0
v_mul_u32_u24 v2, 1280, v2
v_bfe_u32 v3, v0, 5, 1
v_lshl_add_u32 v2, v3, 4, v2
v_lshlrev_b32 v3, 4, v1              ; lane*16
v_lshlrev_b32 v4, 3, v1              ; lane*8
v_lshlrev_b32 v5, 4, v0              ; tid*16
s_mul_i32 s20, s17, {32*1280}
s_lshl_b32 s21, s18, 6
s_add_u32 s21, s21, s20
s_lshl_b32 s22, s19, 6
s_add_u32 s22, s22, s20
buffer_load_dwordx4 v[8:11], v2, s[8:11], s21 offen
buffer_load_dwordx4 v[12:15], v2, s[8:11], s21 offen offset:32
buffer_load_dwordx4 v[16:19], v2, s[8:11], s22 offen
buffer_load_dwordx4 v[20:23], v2, s[8:11], s22 offen offset:32
v_mov_b64 v[24:25], 0
v_mov_b64 v[26:27], 0
v_mov_b64 v[28:29], -1
v_mov_b64 v[30:31], -1
s_lshl_b32 s20, s16, 12
s_add_u32 s21, s20, {L.FLAGS}
buffer_store_dwordx4 v[24:27], v5, s[4:7], s21 offen sc1
s_add_u32 s21, s20, {L.R_INBOX(0)}
s_add_u32 s22, s20, {L.R_INBOX(1) - 96*4096}
s_cmp_lt_u32 s16, 96
s_cselect_b32 s21, s21, s22
buffer_store_dwordx4 v[28:31], v5, s[4:7], s21 offen sc1
s_cmp_ge_u32 s16, 10
s_cbranch_scc1 L_nopad
''')
for off in (L.H(0), L.H(0) + 65 * L.BLK, L.H(1), L.H(1) + 65 * L.BLK):
    A(f's_add_u32 s21, s20, {off}\nbuffer_store_dwordx4 v[24:27], v5, s[4:7], s21 offen sc1')
A(f'''
L_nopad:
s_mul_i32 s20, s17, {L.SBLK}
s_add_u32 s20, s20, {L.X(0)}
s_waitcnt vmcnt(0)
''')
for k in range(2):
    b0 = 8 + 8 * k
    A(f'''
    s_lshl_b32 s21, s{18+k}, 11
    s_add_u32 s21, s21, s20
    buffer_store_dwordx4 v[{b0}:{b0+3}], v3, s[4:7], s21 offen sc1
    buffer_store_dwordx4 v[{b0+4}:{b0+7}], v3, s[4:7], s21 offen offset:1024 sc1
    s_lshl_b32 s21, s{18+k}, 8
    s_add_u32 s21, s21, s20
    s_add_u32 s21, s21, 40960
    ''')
    for j in range(8):
        A(f'v_lshlrev_b32 v{32+2*j}, 16, v{b0+j}\nv_and_b32 v{33+2*j}, 0xffff0000, v{b0+j}')
    groles.emit_stats(A, 32, 48 + 4 * k, 4, 21)
A(f'''
s_waitcnt vmcnt(0)
s_barrier
s_cmp_lg_u32 s12, 0
s_cbranch_scc1 L_noinit
s_mov_b32 s16, 1
s_atomic_add s16, s[90:91], 128
s_waitcnt lgkmcnt(0)
L_noinit:
s_getpc_b64 s[16:17]
L_pc:
s_add_u32 s16, s16, role_table-L_pc
s_addc_u32 s17, s17, 0
s_lshl_b32 s18, s94, 3
s_load_dwordx2 s[96:97], s[16:17], s18
s_mov_b32 s95, 0
s_waitcnt lgkmcnt(0)
L_disp:
s_bfe_u32 s13, s96, 0x80008
s_bfe_u32 s14, s96, 0x40010
s_bfe_u32 s15, s96, 0x40014
s_and_b32 s16, s96, 0xff
''')
stamp_init(A)
for k, lab in LAB.items():
    A(f's_cmp_eq_u32 s16, {k}\ns_cbranch_scc1 {lab}')
A('s_branch L_fin')
A('''
L_next:
''')
if STAMP:
    A(f'''
    s_memrealtime s[84:85]
    s_memtime s[86:87]
    s_waitcnt lgkmcnt(0)
    s_sub_u32 s86, s86, s3
    v_mov_b32 v12, s82
    v_mov_b32 v13, s84
    v_mov_b32 v14, s96
    v_mov_b32 v15, s86
    v_mov_b32 v26, s78
    v_mov_b32 v27, s79
    s_lshl_b32 s16, s94, 9
    s_lshl_b32 s17, s95, 8
    s_add_u32 s16, s16, s17
    s_lshl_b32 s17, s12, 6
    s_add_u32 s16, s16, s17
    s_add_u32 s16, s16, {L.DBG}
    v_mov_b32 v9, 0
    ''')
    for k in range(10):
        A(f'v_mov_b32 v{16+k}, s{64+k}')
    A('''
    s_mov_b64 exec, 1
    buffer_store_dwordx4 v[12:15], v9, s[4:7], s16 offen
    buffer_store_dwordx4 v[16:19], v9, s[4:7], s16 offen offset:16
    buffer_store_dwordx4 v[20:23], v9, s[4:7], s16 offen offset:32
    buffer_store_dwordx4 v[24:27], v9, s[4:7], s16 offen offset:48
    s_mov_b64 exec, -1
    s_waitcnt vmcnt(0)
    s_add_u32 s95, s95, 1
    ''')
A('''
s_waitcnt vmcnt(0) lgkmcnt(0)
s_mov_b32 s96, s97
s_mov_b32 s97, 0
s_branch L_disp
L_exit:
v_mov_b32 v1, s96
v_mov_b32 v2, 64
s_mov_b64 exec, 1
global_store_dword v2, v1, s[90:91]
s_waitcnt vmcnt(0)
L_fin:
L_done:
s_endpgm
''')
A('RR:')
rrole.gen_R(A)
A('s_branch L_next')
groles.gen_all_gemms(A)
groles.gen_rl(A)
groles.gen_at(A)
A('s_endpgm')
A.lines.append('.p2align 6')
A.lines.append('.type role_table,@object')
A.lines.append('role_table:')
for e in tab:
    A.lines.append(f'    .long {e[0]:#x}, {e[1]:#x}')
A.end(KN, 512, accum=256)
import haz
A.lines, nfix = haz.run(A.lines, verbose=bool(os.environ.get('HAZV')))
hdr = open(f'cdna_kernels/{NAME}.s.ref').read().split('\n')
hdr = [l for l in hdr if l.startswith(';') and '@launch' not in l and 'Override' not in l and 'grid=ceil' not in l]
out = sys.argv[1] if len(sys.argv) > 1 else f'cdna_kernels/{NAME}.s'
txt = A.text('\n'.join(hdr))
if not os.environ.get('LIST'):
    txt = txt.replace(f'; @launch kernel={KN} grid', '; @launch grid')
open(out, 'w').write(txt)
```
